```python
import torch

def _softmax(x, axis=-1):
    return torch.softmax(x, dim=axis)

def _gelu(x):
    return torch.nn.functional.gelu(x, approximate='tanh')

def _silu(x):
    return torch.nn.functional.silu(x)

def _sigmoid(x):
    return torch.sigmoid(x)

def _layernorm(x, axis=-1, eps=1e-05):
    m = x.mean(dim=axis, keepdim=True)
    v = x.var(dim=axis, keepdim=True, unbiased=False)
    return (x - m) / torch.sqrt(v + eps)

def _scatter_add(tgt, idx, src, axis=0):
    return tgt.clone().index_add_(axis, idx, src)

def _segment_sum(src, seg, n):
    out = torch.zeros((n,) + src.shape[1:], dtype=src.dtype)
    return out.index_add_(0, seg, src)

def _pad(x, pw):
    flat = tuple((v for pair in reversed(pw) for v in pair))
    return torch.nn.functional.pad(x, flat)
kernel_name = 'adaLN_cond__linear_kernel_hedgehog__glu_gated_bilinear__prompt'

def setup_inputs():

    _w = lambda a: (lambda t: t.to(torch.bfloat16) if t.is_floating_point() else t)(torch.as_tensor(a))

    def _A_setup():
        B, S, D, H = (1, 2048, 448, 16)
        Dh = D // H
        return {'x': _w((lambda *s: torch.randn(*s, dtype=torch.bfloat16) * 0.05)(B, S, D)), 'wqkv': _w((lambda *s: torch.randn(*s, dtype=torch.bfloat16) * 0.4)(D, 3 * D)), 'w_phi': _w((lambda *s: torch.randn(*s, dtype=torch.bfloat16) * 0.4)(H, Dh, Dh) * Dh ** (-0.5)), 'wo': _w((lambda *s: torch.randn(*s, dtype=torch.bfloat16) * 0.05)(D, D))}
    _A_in = _A_setup()

    def _B_setup():
        B, S, D, F = (1, 2048, 448, 1792)
        return {'x': _w((lambda *s: torch.randn(*s, dtype=torch.bfloat16) * 0.05)(B, S, D)), 'w_gate': _w((lambda *s: torch.randn(*s, dtype=torch.bfloat16) * 1.6)(D, F) * D ** (-0.5)), 'w_up': _w((lambda *s: torch.randn(*s, dtype=torch.bfloat16) * 1.6)(D, F) * D ** (-0.5)), 'w_down': _w((lambda *s: torch.randn(*s, dtype=torch.bfloat16) * 1.6)(F, D) * F ** (-0.5))}
    _B_in = _B_setup()
    return {'A_x': _A_in['x'], 'A_wqkv': _A_in['wqkv'], 'A_w_phi': _A_in['w_phi'], 'A_wo': _A_in['wo'], 'B_x': _B_in['x'], 'B_w_gate': _B_in['w_gate'], 'B_w_up': _B_in['w_up'], 'B_w_down': _B_in['w_down'], 'c': _w((lambda *s: torch.randn(*s, dtype=torch.bfloat16) * 0.1)(1, 448) * 8.0), 'w_mod': _w((lambda *s: torch.randn(*s, dtype=torch.bfloat16) * 0.1)(448, 6 * 448) * 448 ** (-0.5) * 8.0)}

def reference(A_x, A_wqkv, A_w_phi, A_wo, B_x, B_w_gate, B_w_up, B_w_down, c, w_mod):

    def _A_ref(x, wqkv, w_phi, wo):
        B, S, D = x.shape
        H = 16
        Dh = D // H
        qkv = (lambda x, *d: x.permute(*d))((x @ wqkv).reshape(B, S, 3, H, Dh), 2, 0, 3, 1, 4)
        q, k, v = (qkv[0], qkv[1], qkv[2])
        pq = torch.einsum('bhsd,hdf->bhsf', q, w_phi)
        pk = torch.einsum('bhsd,hdf->bhsf', k, w_phi)
        phi_q = torch.concatenate([_softmax(pq, axis=-1), _softmax(-pq, axis=-1)], axis=-1)
        phi_k = torch.concatenate([_softmax(pk, axis=-1), _softmax(-pk, axis=-1)], axis=-1)
        kv = torch.einsum('bhsf,bhsd->bhfd', phi_k, v)
        z = torch.einsum('bhsf->bhf', phi_k)
        num = torch.einsum('bhqf,bhfd->bhqd', phi_q, kv)
        den = torch.einsum('bhqf,bhf->bhq', phi_q, z)[..., None] + 1e-06
        o = num / den
        return (lambda x, *d: x.permute(*d))(o, 0, 2, 1, 3).reshape(B, S, D) @ wo

    def _B_ref(x, w_gate, w_up, w_down):
        g = torch.einsum('bsd,df->bsf', x, w_gate)
        u = torch.einsum('bsd,df->bsf', x, w_up)
        h = g * u
        return torch.einsum('bsf,fd->bsd', h, w_down)
    x = A_x
    mod = (_silu(c) @ w_mod).reshape(c.shape[0], 6, 1, -1)
    sa, ca, ga, sb, cb, gb = (mod[:, 0].clone(), mod[:, 1].clone(), mod[:, 2].clone(), mod[:, 3].clone(), mod[:, 4].clone(), mod[:, 5].clone())
    h = _layernorm(x, axis=-1) * (1 + ca) + sa
    x = x + ga * _A_ref(h, A_wqkv, A_w_phi, A_wo)
    h = _layernorm(x, axis=-1) * (1 + cb) + sb
    x = x + gb * _B_ref(h, B_w_gate, B_w_up, B_w_down)
    return x
```

```python
import re

REG_RE = re.compile(r'\b([vas])(?:\[(\d+):(\d+)\]|(\d+))')
TRANS = ('v_exp_f32', 'v_log_f32', 'v_rcp_f32', 'v_rsq_f32', 'v_sqrt_f32', 'v_sin_f32', 'v_cos_f32', 'v_rcp_iflag_f32')


def regs_of(op):
    out = set()
    op = op.strip()
    for m in REG_RE.finditer(op):
        k = m.group(1)
        if m.group(4) is not None:
            out.add(k + m.group(4))
        else:
            for i in range(int(m.group(2)), int(m.group(3)) + 1):
                out.add(k + str(i))
    for sp in ('vcc', 'exec', 'm0'):
        if re.search(r'\b' + sp + r'(_lo|_hi)?\b', op):
            out.add(sp)
    return out


def split_ops(s):
    ops, depth, cur = [], 0, ''
    for ch in s:
        if ch == '[':
            depth += 1
        if ch == ']':
            depth -= 1
        if ch == ',' and depth == 0:
            ops.append(cur.strip())
            cur = ''
        else:
            cur += ch
    if cur.strip():
        ops.append(cur.strip())
    return ops


class Ins:
    __slots__ = ('text', 'op', 'kind', 'wr', 'rd', 'blk', 'ws', 'srcC', 'srcAB', 'passes', 'dpp', 'store_data', 'lanesel', 'auto')

    def __init__(self, text, blk):
        self.text = text
        self.blk = blk
        self.auto = False
        t = text.split(';')[0].strip()
        parts = t.split(None, 1)
        self.op = parts[0]
        rest = parts[1] if len(parts) > 1 else ''
        op = self.op
        self.ws = 1
        self.srcC = set()
        self.srcAB = set()
        self.passes = 0
        self.dpp = False
        self.store_data = set()
        self.lanesel = set()
        ops = split_ops(rest)
        mods = ''
        if ops:
            last = ops[-1].split(None, 1)
            if len(last) > 1 and not last[0].endswith('('):
                ops[-1] = last[0]
                mods = last[1]
        wr, rd = set(), set()
        if op.startswith('v_mfma'):
            self.kind = 'mfma'
            wr = regs_of(ops[0])
            self.srcAB = regs_of(ops[1]) | regs_of(ops[2])
            self.srcC = regs_of(ops[3])
            rd = self.srcAB | self.srcC
            self.passes = 8 if '32x32x16' in op else 4 if '16x16x32' in op else None
            assert self.passes, op
        elif op.startswith('v_'):
            self.kind = 'trans' if op.replace('_e32', '').replace('_e64', '') in TRANS else 'valu'
            if op.startswith('v_cmp'):
                wr = regs_of(ops[0])
                for o in ops[1:]:
                    rd |= regs_of(o)
            elif op.startswith('v_permlane') and 'swap' in op:
                wr = regs_of(ops[0]) | regs_of(ops[1])
                rd = set(wr)
            elif op.startswith(('v_add_co', 'v_sub_co', 'v_addc_co', 'v_subb_co', 'v_subrev_co', 'v_mad_u64_u32', 'v_div_scale')):
                wr = regs_of(ops[0]) | regs_of(ops[1])
                for o in ops[2:]:
                    rd |= regs_of(o)
            elif op == 'v_nop':
                pass
            else:
                wr = regs_of(ops[0])
                for o in ops[1:]:
                    rd |= regs_of(o)
                if op.startswith(('v_fmac', 'v_dot2c', 'v_writelane', 'v_pk_fmac')) or '_dpp' in op or 'sdwa' in op:
                    rd |= wr
                if op.startswith(('v_readlane', 'v_writelane')):
                    self.lanesel = {r for r in regs_of(ops[2])}
            if '_dpp' in op:
                self.dpp = True
        elif op.startswith('ds_'):
            self.kind = 'ds'
            if op.startswith(('ds_read', 'ds_bpermute', 'ds_permute', 'ds_swizzle')) or 'rtn' in op:
                wr = regs_of(ops[0])
                for o in ops[1:]:
                    rd |= regs_of(o)
            else:
                for o in ops:
                    rd |= regs_of(o)
        elif op.startswith(('buffer_', 'global_', 'flat_')):
            self.kind = 'vmem'
            is_lds = ' lds' in (' ' + mods) or 'load_lds' in op
            if op in ('buffer_inv', 'buffer_wbl2'):
                pass
            elif is_lds:
                for o in ops:
                    rd |= regs_of(o)
                rd.add('m0')
                self.kind = 'vmem_lds'
            elif '_load' in op:
                wr = regs_of(ops[0])
                for o in ops[1:]:
                    rd |= regs_of(o)
                if 'd16' in op:
                    rd |= wr
            elif '_store' in op:
                for o in ops:
                    rd |= regs_of(o)
                data = ops[0] if op.startswith('buffer_') else ops[1]
                if 'x3' in op or 'x4' in op:
                    self.store_data = regs_of(data)
            elif '_atomic' in op:
                ret = re.search(r'\bsc0\b', mods) is not None
                if ret and op.startswith('global_'):
                    wr = regs_of(ops[0])
                    for o in ops[1:]:
                        rd |= regs_of(o)
                else:
                    for o in ops:
                        rd |= regs_of(o)
                    if ret:
                        wr = regs_of(ops[0])
            else:
                raise ValueError(text)
        elif op.startswith('s_'):
            self.kind = 'salu'
            if op == 's_nop':
                self.ws = int(ops[0], 0) + 1
                self.kind = 'nop'
            elif op == 's_waitcnt':
                self.kind = 'wait'
            elif op.startswith(('s_load', 's_buffer_load', 's_memtime', 's_memrealtime')):
                self.kind = 'smem'
                wr = regs_of(ops[0])
                for o in ops[1:]:
                    rd |= regs_of(o)
            elif op.startswith(('s_cmp', 's_cbranch', 's_branch', 's_barrier', 's_endpgm', 's_setprio', 's_sleep', 's_bitcmp')):
                for o in ops:
                    rd |= regs_of(o)
            elif 'saveexec' in op:
                wr = regs_of(ops[0]) | {'exec'}
                rd = regs_of(ops[1]) | {'exec'}
            else:
                wr = regs_of(ops[0])
                for o in ops[1:]:
                    rd |= regs_of(o)
                if op.startswith(('s_addk', 's_mulk', 's_cmov')):
                    rd |= wr
        else:
            raise ValueError('unknown instruction: ' + text)
        self.wr, self.rd = wr, rd


def is_vec(r):
    return r[0] in 'va' and r != 'vcc'


class Kern:
    def __init__(self, name):
        self.name = name
        self.items = []
        self.blk = ()
        self.nblk = 0
        self.pend_vm = []
        self.pend_lg = []
        self.log = []
        self.nlabel = 0
        self.maxv = -1
        self.maxa = -1
        self.maxs = -1

    def _counts(self, i, p, c):
        b = i.blk
        return p.blk[:len(b)] == b or c[:len(b)] == b

    def _dist(self, idx, cur_blk):
        p = self.items[idx]
        d = 0
        for i in self.items[idx + 1:]:
            if isinstance(i, Ins) and self._counts(i, p, cur_blk):
                d += i.ws
        return d

    def _need_ws(self, c):
        need = 0
        n = len(self.items)
        d_all = 0
        for idx in range(n - 1, -1, -1):
            p = self.items[idx]
            if not isinstance(p, Ins):
                continue
            req = self._hazard(p, c)
            if req:
                d = self._dist(idx, c.blk)
                need = max(need, req - d)
            if c.blk[:len(p.blk)] == p.blk:
                d_all += p.ws
            if d_all > 24:
                break
        return need

    @staticmethod
    def _hazard(p, c):
        req = 0
        pv = p.kind in ('valu', 'trans')
        cv = c.kind in ('valu', 'trans')
        if pv:
            vw = {r for r in p.wr if is_vec(r)}
            sw = {r for r in p.wr if not is_vec(r)}
            if c.kind == 'mfma' and vw & c.rd:
                req = max(req, 2)
            if cv and c.op.startswith('v_permlane') and vw & c.rd:
                req = max(req, 2)
            if cv and c.dpp and vw & c.rd:
                req = max(req, 2)
            if cv and c.op.startswith(('v_readlane', 'v_readfirstlane')) and vw & c.rd:
                req = max(req, 1)
            if p.kind == 'trans' and c.kind in ('valu', 'mfma') and vw & c.rd:
                req = max(req, 1)
            if sw:
                if cv and sw & c.rd:
                    req = max(req, 2)
                if cv and sw & c.lanesel:
                    req = max(req, 4)
                if c.kind in ('vmem', 'vmem_lds') and sw & c.rd:
                    req = max(req, 5)
                if c.kind in ('salu', 'smem') and sw & c.rd:
                    req = max(req, 2)
                if 'exec' in sw:
                    req = max(req, 5)
        if p.kind == 'mfma':
            far = {8: 12, 4: 8}[p.passes]
            if c.kind == 'mfma':
                if p.wr & c.srcAB:
                    req = max(req, far)
                if p.wr & c.srcC:
                    if not (p.wr == c.srcC and p.passes == c.passes):
                        req = max(req, {8: 10, 4: 6}[p.passes])
                if p.wr & c.wr and not (p.wr & c.srcC):
                    req = max(req, far)
            elif c.kind in ('valu', 'trans'):
                if p.wr & (c.rd | c.wr):
                    req = max(req, far)
                if p.srcC & c.wr:
                    req = max(req, {8: 7, 4: 3}[p.passes])
            elif c.kind in ('ds', 'vmem', 'vmem_lds'):
                if p.wr & (c.rd | c.wr):
                    req = max(req, far)
                if p.srcC & c.wr:
                    req = max(req, {8: 7, 4: 3}[p.passes])
        if p.kind == 'salu' and 'm0' in p.wr and c.kind == 'vmem_lds':
            req = max(req, 1)
        if p.store_data:
            if cv and p.store_data & c.wr:
                req = max(req, 2)
            elif p.store_data & c.wr:
                req = max(req, 1)
        return req

    def _younger_sure(self, lst, k, cur_blk):
        p = lst[k]
        n = 0
        for q in lst[k + 1:]:
            b = q.blk
            if p.blk[:len(b)] == b or cur_blk[:len(b)] == b:
                n += 1
        return n

    def _apply_wait(self, ins):
        t = ins.text
        m = re.search(r'vmcnt\((\d+)\)', t)
        if m:
            n = int(m.group(1))
            keep = []
            for k, p in enumerate(self.pend_vm):
                if self._younger_sure(self.pend_vm, k, ins.blk) >= n and self._wait_covers(ins, p):
                    continue
                keep.append(p)
            self.pend_vm = keep
        m = re.search(r'lgkmcnt\((\d+)\)', t)
        if m:
            n = int(m.group(1))
            has_smem = any(p.kind == 'smem' for p in self.pend_lg)
            keep = []
            for k, p in enumerate(self.pend_lg):
                ok = (n == 0) or (not has_smem and self._younger_sure(self.pend_lg, k, ins.blk) >= n)
                if ok and self._wait_covers(ins, p):
                    continue
                keep.append(p)
            self.pend_lg = keep

    def _wait_covers(self, w, p):
        if p.blk[:len(w.blk)] == w.blk:
            return True
        self._restore.setdefault(w.blk, []).append(p)
        return True

    _restore = None

    def raw(self, s):
        self.items.append(s)

    def c(self, s):
        self.items.append('    ; ' + s)

    def __call__(self, text, auto=False):
        if self._restore is None:
            self._restore = {}
        ins = Ins(text, self.blk)
        ins.auto = auto
        touched = ins.rd | ins.wr
        if ins.kind not in ('wait', 'nop'):
            nv = None
            for k, p in enumerate(self.pend_vm):
                if p.wr & touched and not (ins.kind == 'vmem' and 'd16' in ins.op and 'd16' in p.op and not (p.wr & (ins.rd - ins.wr))):
                    n = self._younger_sure(self.pend_vm, k, self.blk)
                    nv = n if nv is None else min(nv, n)
            nl = None
            has_smem = any(p.kind == 'smem' for p in self.pend_lg)
            for k, p in enumerate(self.pend_lg):
                if p.wr & touched:
                    n = 0 if has_smem else self._younger_sure(self.pend_lg, k, self.blk)
                    nl = n if nl is None else min(nl, n)
            w = []
            if nv is not None:
                w.append('vmcnt(%d)' % min(nv, 63))
            if nl is not None:
                w.append('lgkmcnt(%d)' % min(nl, 15))
            if w:
                self('s_waitcnt ' + ' '.join(w), auto=True)
            need = self._need_ws(ins)
            while need > 0:
                k = min(need, 16)
                self.items.append(Ins('s_nop %d' % (k - 1), self.blk))
                need -= k
        self.items.append(ins)
        if ins.kind == 'wait':
            self._apply_wait(ins)
        elif ins.kind in ('vmem', 'vmem_lds'):
            self.pend_vm.append(ins)
        elif ins.kind in ('ds', 'smem'):
            self.pend_lg.append(ins)
        for r in touched:
            if r in ('vcc', 'exec', 'm0'):
                continue
            n = int(r[1:])
            if r[0] == 'v':
                self.maxv = max(self.maxv, n)
            elif r[0] == 'a':
                self.maxa = max(self.maxa, n)
            else:
                self.maxs = max(self.maxs, n)
        return ins

    def label(self, base):
        self.nlabel += 1
        return '%s_%s_%d' % (self.name, base, self.nlabel)

    def skip_begin(self, branch):
        L = self.label('skip')
        self('%s %s' % (branch, L))
        self.nblk += 1
        self.blk = self.blk + (self.nblk,)
        return L

    def skip_end(self, L):
        b = self.blk
        self.blk = self.blk[:-1]
        self.raw(L + ':')
        back = self._restore.pop(b, []) if self._restore else []
        for p in reversed(back):
            lst = self.pend_vm if p.kind in ('vmem', 'vmem_lds') else self.pend_lg
            if p not in lst:
                lst.insert(0, p)

    def fork(self, branch):
        L = self.label('path')
        self('%s %s' % (branch, L))
        return (L, list(self.pend_vm), list(self.pend_lg), self.blk)

    def resume(self, f):
        L, vm, lg, blk = f
        self.raw(L + ':')
        self.pend_vm, self.pend_lg, self.blk = list(vm), list(lg), blk
        self.items.append(Ins('s_nop 15', blk))
        self.items[-1].text = None
        self.items[-1].ws = 0
        self.items[-1].kind = 'nop'
        self._barrier_here()

    def _barrier_here(self):
        self.items.append(Ins('s_nop 4', self.blk))

    def end(self):
        self('s_endpgm')
        self.pend_vm, self.pend_lg = [], []

    def wait(self, vm=None, lg=None):
        w = []
        if vm is not None:
            w.append('vmcnt(%d)' % vm)
        if lg is not None:
            w.append('lgkmcnt(%d)' % lg)
        self('s_waitcnt ' + ' '.join(w))

    def wait_for(self, ins):
        if ins in self.pend_vm:
            k = self.pend_vm.index(ins)
            self.wait(vm=min(63, self._younger_sure(self.pend_vm, k, self.blk)))

    def nvm(self):
        return len(self.pend_vm)

    def render(self):
        out = ['.p2align 8', '.globl %s' % self.name, '.type %s,@function' % self.name, self.name + ':']
        for i in self.items:
            if isinstance(i, Ins):
                if i.text is not None:
                    out.append('    ' + i.text)
            else:
                out.append(i)
        return '\n'.join(out)

    def descriptor(self):
        nv = self.maxv + 1
        acc = max(4, (nv + 3) // 4 * 4)
        tot = acc + (self.maxa + 1) if self.maxa >= 0 else nv
        return '\n'.join([
            '.p2align 6',
            '.amdhsa_kernel %s' % self.name,
            '  .amdhsa_next_free_vgpr %d' % max(tot, 1),
            '  .amdhsa_next_free_sgpr %d' % max(self.maxs + 1, 16),
            '  .amdhsa_accum_offset %d' % acc,
            '  .amdhsa_group_segment_fixed_size 0',
            '  .amdhsa_kernarg_size 104',
            '  .amdhsa_user_sgpr_count 2',
            '  .amdhsa_user_sgpr_kernarg_segment_ptr 1',
            '  .amdhsa_system_sgpr_workgroup_id_x 1',
            '.end_amdhsa_kernel'])


def vr(a, n=1, k='v'):
    return '%s%d' % (k, a) if n == 1 else '%s[%d:%d]' % (k, a, a + n - 1)


def ar(a, n=1):
    return vr(a, n, 'a')


def sr(a, n=1):
    return vr(a, n, 's')
```

```python
import sys
from asmlib import *

NAME = 'adaLN_cond__linear_kernel_hedgehog__glu_gated_bilinear__prompt'
PROF = '--prof' in sys.argv

P1, P2, GA, GB = 0x0, 0x1000, 0x2000, 0x2800
KV, STATS = 0x10000, 0x30000
XH, X1 = 0x100000, 0x2C0000
WQ, WP, WO, WGU, WD = 0x480000, 0x5D0000, 0x5E0000, 0x650000, 0x960000
PHIQ, HH = 0xB00000, 0xF00000
TS = 0x2000000
WS_BYTES = 0x10000000
LOG2E = 0x3fb8aa3b
OOB = 0x7f000000

A_X, A_WQKV, A_WPHI, A_WO, B_X, B_WG, B_WU, B_WD, A_C, A_WMOD, A_OUT, A_DBG, A_WS = [8 * i for i in range(13)]

S_WS = 8
S_TS = 80


def srd(K, s, sptr, nbytes):
    K('s_mov_b32 s%d, s%d' % (s, sptr))
    K('s_and_b32 s%d, s%d, 0xffff' % (s + 1, sptr + 1))
    K('s_mov_b32 s%d, 0x%x' % (s + 2, nbytes))
    K('s_mov_b32 s%d, 0x20000' % (s + 3))


class Prof:
    def __init__(self, K, kid):
        self.K, self.kid, self.n = K, kid, 0

    def stamp(self):
        if PROF:
            assert self.n < 8
            self.K('s_memrealtime s[%d:%d]' % (S_TS + 2 * self.n, S_TS + 2 * self.n + 1))
            self.n += 1

    def flush(self, swave, vtmp):
        if not PROF:
            return
        K = self.K
        self.stamp()
        K.wait(lg=0)
        K('s_cmp_eq_u32 s%d, 0' % swave)
        L = K.skip_begin('s_cbranch_scc0')
        K('s_lshl_b32 s96, s2, 5')
        K('s_add_u32 s96, s96, 0x%x' % (TS + self.kid * 0x10000))
        K('v_mov_b32 v%d, 0' % (vtmp + 1))
        for i in range(self.n):
            K('v_mov_b32 v%d, s%d' % (vtmp, S_TS + 2 * i))
            K('buffer_store_dword v%d, v%d, s[8:11], s96 offen offset:%d' % (vtmp, vtmp + 1, 4 * i))
            K('s_nop 1')
        K.skip_end(L)


def unpack(K, lo, hi, src):
    K('v_lshlrev_b32 v%d, 16, v%d' % (lo, src))
    K('v_and_b32 v%d, 0xffff0000, v%d' % (hi, src))


def weave(K, mfmas, fill):
    n = len(mfmas)
    done = 0
    for i, m in enumerate(mfmas):
        K(m)
        upto = (len(fill) * (i + 1) + n - 1) // n
        while done < upto:
            K(fill[done])
            done += 1


def k0_prep():
    K = Kern('prep_kernel')
    NMOD, NLN, NZ = 42, 64, 8
    B_LN = NMOD
    B_Z = B_LN + NLN
    B_WQ = B_Z + NZ
    B_WP = B_WQ + 84
    B_WO = B_WP + 2
    B_GU = B_WO + 28
    B_WD = B_GU + 196
    B_END = B_WD + 98
    pf = Prof(K, 0)
    pf.stamp()
    K('s_cmp_ge_u32 s2, %d' % B_END)
    f_end = K.fork('s_cbranch_scc1')
    K('s_load_dwordx2 s[4:5], s[0:1], %d' % A_WS)
    K('s_load_dwordx8 s[16:23], s[0:1], 0')
    K('s_load_dwordx8 s[24:31], s[0:1], %d' % B_WG)
    K('s_load_dwordx2 s[32:33], s[0:1], %d' % A_WMOD)
    K('v_lshrrev_b32 v1, 6, v0')
    K('v_readfirstlane_b32 s3, v1')
    K('v_and_b32 v1, 63, v0')
    K('v_and_b32 v2, 31, v0')
    K('v_bfe_u32 v3, v0, 5, 1')
    K('v_lshlrev_b32 v4, 4, v1')
    K.wait(lg=0)
    srd(K, S_WS, 4, WS_BYTES)
    K('s_cmp_lt_u32 s2, %d' % B_LN)
    f_mod = K.fork('s_cbranch_scc1')
    K('s_cmp_lt_u32 s2, %d' % B_Z)
    f_ln = K.fork('s_cbranch_scc1')
    K('s_cmp_lt_u32 s2, %d' % B_WQ)
    f_z = K.fork('s_cbranch_scc1')
    K('s_cmp_lt_u32 s2, %d' % B_WP)
    f_wq = K.fork('s_cbranch_scc1')
    K('s_cmp_lt_u32 s2, %d' % B_WO)
    f_wp = K.fork('s_cbranch_scc1')
    K('s_cmp_lt_u32 s2, %d' % B_GU)
    f_wo = K.fork('s_cbranch_scc1')
    K('s_cmp_lt_u32 s2, %d' % B_WD)
    f_gu = K.fork('s_cbranch_scc1')

    SR = 40
    NAT = list(range(8))
    DORD = [(j & 3) + 8 * (j >> 2) for j in range(8)]

    def rowoffs(base_s, pitch, rows, dst):
        for j in range(8):
            K('s_add_u32 s%d, s%d, %d' % (dst + j, base_s, rows[j] * pitch))

    def gather(frags):
        for i, fr in enumerate(frags):
            for j, (vo, so, imm) in enumerate(fr):
                K('buffer_load_ushort v%d, v%d, s[12:15], s%d offen offset:%d' % (16 + 8 * i + j, vo, so, imm))
        for i in range(len(frags)):
            for d in range(4):
                K('v_lshl_or_b32 v%d, v%d, 16, v%d' % (64 + 4 * i + d, 16 + 8 * i + 2 * d + 1, 16 + 8 * i + 2 * d))

    def fin():
        pf.n = 1 if PROF else 0
        pf.flush(3, 90)
        K.end()

    K.c('WD re-layout')
    srd(K, 12, 28, 1792 * 896)
    K('s_sub_u32 s34, s2, %d' % B_WD)
    K('s_lshl_b32 s34, s34, 2')
    K('s_add_u32 s34, s34, s3')
    K('s_mul_i32 s35, s34, 9363')
    K('s_lshr_b32 s35, s35, 16')
    K('s_mul_i32 s36, s35, 7')
    K('s_sub_u32 s36, s34, s36')
    K('s_mul_i32 s37, s35, %d' % (32 * 896))
    K('s_lshl_b32 s38, s36, 7')
    K('s_add_u32 s37, s37, s38')
    rowoffs(37, 896, DORD, SR)
    K('s_add_u32 s37, s37, %d' % (16 * 896))
    rowoffs(37, 896, DORD, SR + 8)
    K('v_mul_u32_u24 v5, %d, v3' % (4 * 896))
    K('v_lshl_add_u32 v5, v2, 1, v5')
    gather([[(5, SR + 8 * a + j, 64 * b) for j in range(8)] for a in range(2) for b in range(2)])
    K('s_mul_i32 s37, s36, %d' % (112 * 2048))
    K('s_lshl_b32 s38, s35, 12')
    K('s_add_u32 s37, s37, s38')
    K('s_add_u32 s37, s37, 0x%x' % WD)
    for i in range(4):
        K('buffer_store_dwordx4 v[%d:%d], v4, s[8:11], s37 offen offset:%d' % (64 + 4 * i, 67 + 4 * i, 1024 * i))
    fin()

    K.resume(f_gu)
    K.c('gate/up re-layout')
    K('s_sub_u32 s34, s2, %d' % B_GU)
    K('s_lshl_b32 s34, s34, 2')
    K('s_add_u32 s34, s34, s3')
    K('s_cmp_ge_u32 s34, 392')
    K('s_cselect_b32 s56, s26, s24')
    K('s_cselect_b32 s57, s27, s25')
    K('s_cselect_b32 s58, 256, 0')
    K('s_cselect_b32 s35, 392, 0')
    K('s_sub_u32 s34, s34, s35')
    srd(K, 12, 56, 448 * 3584)
    K('s_mul_i32 s35, s34, 4682')
    K('s_lshr_b32 s35, s35, 16')
    K('s_mul_i32 s36, s35, 14')
    K('s_sub_u32 s36, s34, s36')
    K('s_mul_i32 s37, s35, %d' % (16 * 3584))
    K('s_lshl_b32 s38, s36, 8')
    K('s_add_u32 s37, s37, s38')
    rowoffs(37, 3584, DORD, SR)
    K('v_mul_u32_u24 v5, %d, v3' % (4 * 3584))
    K('v_lshl_add_u32 v5, v2, 1, v5')
    gather([[(5, SR + j, 64 * b) for j in range(8)] for b in range(4)])
    K('v_lshrrev_b32 v6, 4, v2')
    K('s_lshl_b32 s38, s36, 3')
    K('v_add_u32 v6, s38, v6')
    K('v_and_b32 v7, 15, v0')
    K('v_lshlrev_b32 v7, 4, v7')
    K('v_lshl_add_u32 v7, v3, 9, v7')
    K('v_add_u32 v7, s58, v7')
    K('s_mul_i32 s37, s35, 7168')
    K('s_add_u32 s37, s37, 0x%x' % WGU)
    for b in range(4):
        K('v_add_u32 v8, %d, v6' % (2 * b))
        K('v_mul_u32_u24 v9, 9363, v8')
        K('v_lshrrev_b32 v9, 16, v9')
        K('v_mul_u32_u24 v10, 189, v9')
        K('v_add_u32 v10, v10, v8')
        K('v_lshl_add_u32 v%d, v10, 10, v7' % (12 + b))
    for b in range(4):
        K('buffer_store_dwordx4 v[%d:%d], v%d, s[8:11], s37 offen' % (64 + 4 * b, 67 + 4 * b, 12 + b))
    fin()

    K.resume(f_wo)
    K.c('WO re-layout')
    srd(K, 12, 22, 448 * 896)
    K('s_sub_u32 s34, s2, %d' % B_WO)
    K('s_lshl_b32 s34, s34, 2')
    K('s_add_u32 s34, s34, s3')
    K('s_mul_i32 s35, s34, 9363')
    K('s_lshr_b32 s35, s35, 16')
    K('s_mul_i32 s36, s35, 7')
    K('s_sub_u32 s36, s34, s36')
    K('s_mul_i32 s37, s35, %d' % (28 * 896))
    K('s_lshl_b32 s38, s36, 7')
    K('s_add_u32 s37, s37, s38')
    rowoffs(37, 896, DORD, SR)
    K('s_add_u32 s37, s37, %d' % (16 * 896))
    rowoffs(37, 896, DORD, SR + 8)
    K('v_mul_u32_u24 v5, %d, v3' % (4 * 896))
    K('v_lshl_add_u32 v5, v2, 1, v5')
    K('v_cmp_eq_u32 vcc, 0, v3')
    K('v_mov_b32 v7, 0x%x' % OOB)
    K('v_cndmask_b32 v6, v7, v5, vcc')
    gather([[((6 if (a == 1 and j >= 4) else 5), SR + 8 * a + j, 64 * b) for j in range(8)] for b in range(2) for a in range(2)])
    K('s_lshl_b32 s37, s36, 16')
    K('s_lshl_b32 s38, s35, 11')
    K('s_add_u32 s37, s37, s38')
    K('s_add_u32 s37, s37, 0x%x' % WO)
    K('s_add_u32 s38, s37, 0x8000')
    for b in range(2):
        for a in range(2):
            i = 2 * b + a
            K('buffer_store_dwordx4 v[%d:%d], v4, s[8:11], s%d offen offset:%d' % (64 + 4 * i, 67 + 4 * i, 37 + b, 1024 * a))
    fin()

    K.resume(f_wp)
    K.c('w_phi re-layout')
    srd(K, 12, 20, 16 * 1568)
    K('s_sub_u32 s34, s2, %d' % B_WP)
    K('s_lshl_b32 s34, s34, 2')
    K('s_add_u32 s34, s34, s3')
    K('s_mul_i32 s37, s34, 3136')
    rowoffs(37, 56, DORD, SR)
    K('s_add_u32 s37, s37, %d' % (16 * 56))
    rowoffs(37, 56, DORD, SR + 8)
    K('v_mul_u32_u24 v5, %d, v3' % (4 * 56))
    K('v_lshl_add_u32 v5, v2, 1, v5')
    K('v_mov_b32 v7, 0x%x' % OOB)
    K('v_cmp_gt_u32 vcc, 28, v2')
    K('v_cndmask_b32 v5, v7, v5, vcc')
    K('v_cmp_eq_u32 vcc, 0, v3')
    K('v_cndmask_b32 v6, v7, v5, vcc')
    gather([[((6 if (a == 1 and j >= 4) else 5), SR + 8 * a + j, 1568 * b) for j in range(8)] for b in range(2) for a in range(2)])
    K('s_lshl_b32 s37, s34, 12')
    K('s_add_u32 s37, s37, 0x%x' % WP)
    for i in range(4):
        K('buffer_store_dwordx4 v[%d:%d], v4, s[8:11], s37 offen offset:%d' % (64 + 4 * i, 67 + 4 * i, 1024 * i))
    fin()

    K.resume(f_wq)
    K.c('wqkv re-layout')
    srd(K, 12, 18, 448 * 2688)
    K('s_sub_u32 s34, s2, %d' % B_WQ)
    K('s_mul_i32 s35, s34, 21846')
    K('s_lshr_b32 s35, s35, 16')
    K('s_mul_i32 s36, s35, 3')
    K('s_sub_u32 s36, s34, s36')
    K('s_mul_i32 s37, s35, %d' % (16 * 2688))
    K('s_mul_i32 s38, s36, 896')
    K('s_add_u32 s37, s37, s38')
    K('s_mul_i32 s38, s3, 224')
    K('s_add_u32 s37, s37, s38')
    rowoffs(37, 2688, NAT, SR)
    K('v_mul_u32_u24 v5, %d, v3' % (8 * 2688))
    K('v_lshl_add_u32 v5, v2, 1, v5')
    K('v_mov_b32 v7, 0x%x' % OOB)
    K('v_cmp_gt_u32 vcc, 28, v2')
    K('v_cndmask_b32 v5, v7, v5, vcc')
    gather([[(5, SR + j, 56 * b) for j in range(8)] for b in range(4)])
    K('s_mul_i32 s37, s3, %d' % (4 * 86016))
    K('s_lshl_b32 s38, s34, 10')
    K('s_add_u32 s37, s37, s38')
    K('s_add_u32 s37, s37, 0x%x' % WQ)
    for b in range(4):
        K('buffer_store_dwordx4 v[%d:%d], v4, s[8:11], s37 offen' % (64 + 4 * b, 67 + 4 * b))
        if b < 3:
            K('s_add_u32 s37, s37, 86016')
    fin()

    K.resume(f_z)
    K.c('zero the kv accumulators')
    K('s_sub_u32 s34, s2, %d' % B_Z)
    K('s_lshl_b32 s34, s34, 14')
    K('s_lshl_b32 s35, s3, 12')
    K('s_add_u32 s34, s34, s35')
    K('s_add_u32 s34, s34, 0x%x' % KV)
    for i in range(4):
        K('v_mov_b32 v%d, 0' % (8 + i))
    for i in range(4):
        K('buffer_store_dwordx4 v[8:11], v4, s[8:11], s34 offen offset:%d' % (1024 * i))
    fin()

    K.resume(f_ln)
    K.c('layernorm 1 (no modulation)')
    srd(K, 12, 16, 2048 * 896)
    K('s_sub_u32 s34, s2, %d' % B_LN)
    K('s_mul_i32 s35, s34, 28672')
    K('v_lshrrev_b32 v5, 3, v0')
    K('v_and_b32 v6, 7, v0')
    K('v_mul_u32_u24 v7, 896, v5')
    K('v_lshl_add_u32 v7, v6, 4, v7')
    for i in range(7):
        K('buffer_load_dwordx4 v[%d:%d], v7, s[12:15], s35 offen offset:%d' % (16 + 4 * i, 19 + 4 * i, 128 * i))
    K('v_lshrrev_b32 v8, 1, v6')
    K('v_lshlrev_b32 v8, 10, v8')
    K('v_and_b32 v9, 1, v0')
    K('v_lshl_add_u32 v8, v9, 9, v8')
    K('v_lshl_add_u32 v8, v5, 4, v8')
    K('s_add_u32 s35, s35, 0x%x' % XH)
    F = 48
    for d in range(28):
        unpack(K, F + 2 * d, F + 2 * d + 1, 16 + d)
    K('v_pk_add_f32 v[10:11], v[%d:%d], v[%d:%d]' % (F, F + 1, F + 2, F + 3))
    for d in range(2, 28):
        K('v_pk_add_f32 v[10:11], v[10:11], v[%d:%d]' % (F + 2 * d, F + 2 * d + 1))

    def red8(v):
        K('v_add_f32 v%d, v%d, v%d' % (v, v, v + 1))
        K('v_add_f32_dpp v%d, v%d, v%d quad_perm:[1,0,3,2] row_mask:0xf bank_mask:0xf' % (v, v, v))
        K('v_add_f32_dpp v%d, v%d, v%d quad_perm:[2,3,0,1] row_mask:0xf bank_mask:0xf' % (v, v, v))
        K('v_add_f32_dpp v%d, v%d, v%d row_half_mirror row_mask:0xf bank_mask:0xf' % (v, v, v))
    red8(10)
    K('v_mul_f32 v10, 0x%x, v10' % 0xbb124925)
    K('v_mov_b32 v11, v10')
    for d in range(28):
        K('v_pk_add_f32 v[%d:%d], v[%d:%d], v[10:11]' % (F + 2 * d, F + 2 * d + 1, F + 2 * d, F + 2 * d + 1))
    K('v_pk_mul_f32 v[12:13], v[%d:%d], v[%d:%d]' % (F, F + 1, F, F + 1))
    for d in range(1, 28):
        K('v_pk_fma_f32 v[12:13], v[%d:%d], v[%d:%d], v[12:13]' % (F + 2 * d, F + 2 * d + 1, F + 2 * d, F + 2 * d + 1))
    red8(12)
    K('v_mov_b32 v13, 0x%x' % 0x3727c5ac)
    K('v_fmac_f32 v13, 0x%x, v12' % 0x3b124925)
    K('v_rsq_f32 v12, v13')
    K('v_mov_b32 v13, v12')
    for d in range(28):
        K('v_pk_mul_f32 v[%d:%d], v[%d:%d], v[12:13]' % (F + 2 * d, F + 2 * d + 1, F + 2 * d, F + 2 * d + 1))
        K('v_cvt_pk_bf16_f32 v%d, v%d, v%d' % (16 + d, F + 2 * d, F + 2 * d + 1))
    for i in range(7):
        K('buffer_store_dwordx4 v[%d:%d], v8, s[8:11], s35 offen' % (16 + 4 * i, 19 + 4 * i))
        if i < 6:
            K('s_add_u32 s35, s35, 4096')
    fin()

    K.resume(f_mod)
    K.c('mod = silu(c) @ w_mod, 64 columns per workgroup')
    srd(K, 12, 32, 448 * 5376)
    srd(K, 36, 30, 896)
    K('v_lshrrev_b32 v5, 3, v0')
    K('v_and_b32 v6, 7, v0')
    K('v_mul_u32_u24 v7, 5376, v5')
    K('v_lshl_add_u32 v7, v6, 4, v7')
    K('v_lshlrev_b32 v8, 1, v5')
    K('s_lshl_b32 s34, s2, 7')
    for i in range(14):
        K('buffer_load_ushort v%d, v8, s[36:39], 0 offen offset:%d' % (80 + i, 64 * i))
    for i in range(14):
        K('buffer_load_dwordx4 v[%d:%d], v7, s[12:15], s34 offen' % (16 + 4 * i, 19 + 4 * i))
        if i < 13:
            K('s_add_u32 s34, s34, %d' % (32 * 5376))
    for i in range(14):
        v = 80 + i
        K('v_lshlrev_b32 v%d, 16, v%d' % (v, v))
        K('v_mul_f32 v9, 0x%x, v%d' % (LOG2E | 0x80000000, v))
        K('v_exp_f32 v9, v9')
        K('v_add_f32 v9, 1.0, v9')
        K('v_rcp_f32 v9, v9')
        K('v_mul_f32 v9, v9, v%d' % v)
        K('v_cvt_pk_bf16_f32 v9, v9, v9')
        K('v_and_b32 v%d, 0xffff0000, v9' % v)
    A = 96
    for e in range(8):
        K('v_mov_b32 v%d, 0' % (A + e))
    for i in range(14):
        for d in range(4):
            unpack(K, 10, 11, 16 + 4 * i + d)
            K('v_fmac_f32 v%d, v10, v%d' % (A + 2 * d, 80 + i))
            K('v_fmac_f32 v%d, v11, v%d' % (A + 2 * d + 1, 80 + i))
    K('v_lshlrev_b32 v9, 5, v0')
    K('ds_write_b128 v9, v[%d:%d]' % (A, A + 3))
    K('ds_write_b128 v9, v[%d:%d] offset:16' % (A + 4, A + 7))
    K.wait(lg=0)
    K('s_barrier')
    K('s_cmp_eq_u32 s3, 0')
    L = K.skip_begin('s_cbranch_scc0')
    K('v_lshlrev_b32 v9, 2, v1')
    for r in range(32):
        K('ds_read_b32 v%d, v9 offset:%d' % (16 + r, 256 * r))
    for st in (16, 8, 4, 2, 1):
        for r in range(st):
            K('v_add_f32 v%d, v%d, v%d' % (16 + r, 16 + r, 16 + r + st))
    K('v_cvt_pk_bf16_f32 v16, v16, v16')
    K('v_and_b32 v16, 0xffff0000, v16')
    K('v_add_f32 v17, 1.0, v16')
    K('v_cvt_pk_bf16_f32 v17, v17, v17')
    K('v_and_b32 v17, 0xffff0000, v17')
    K('s_mul_i32 s35, s2, 9363')
    K('s_lshr_b32 s35, s35, 16')
    K('s_mul_i32 s34, s35, 7')
    K('s_sub_u32 s34, s2, s34')
    K('s_lshl_b32 s34, s34, 6')
    K('v_add_u32 v5, s34, v1')
    K('v_lshrrev_b32 v6, 3, v5')
    K('v_and_b32 v7, 7, v5')
    K('v_lshl_add_u32 v6, v6, 4, v7')
    K('v_bfe_u32 v8, v5, 2, 1')
    K('v_and_b32 v9, 3, v5')
    K('v_lshl_add_u32 v9, v8, 4, v9')
    K('v_lshrrev_b32 v7, 4, v5')
    K('v_lshl_add_u32 v7, v7, 5, v9')
    K('v_bfe_u32 v10, v5, 3, 1')
    K('v_lshl_add_u32 v7, v10, 2, v7')
    K('v_lshrrev_b32 v8, 5, v5')
    K('v_lshl_add_u32 v8, v8, 5, v9')
    K('v_bfe_u32 v10, v5, 3, 2')
    K('v_lshl_add_u32 v8, v10, 2, v8')
    for sec, (idx, val, base) in enumerate([(6, 16, P1 + 32), (6, 17, P1), (8, 16, GA), (7, 16, P2 + 32), (7, 17, P2), (8, 16, GB)]):
        K('s_cmp_eq_u32 s35, %d' % sec)
        L2 = K.skip_begin('s_cbranch_scc0')
        K('v_lshlrev_b32 v11, 2, v%d' % idx)
        K('s_mov_b32 s34, 0x%x' % base)
        K('buffer_store_dword v%d, v11, s[8:11], s34 offen' % val)
        K.skip_end(L2)
    K.skip_end(L)
    fin()
    K.resume(f_end)
    K.end()
    return K, (B_END, 256, 8192)


def common_head(K, nwg, extra_loads=()):
    K('s_cmp_ge_u32 s2, %d' % nwg)
    f_end = K.fork('s_cbranch_scc1')
    K('s_load_dwordx2 s[4:5], s[0:1], %d' % A_WS)
    for t in extra_loads:
        K(t)
    K('v_lshrrev_b32 v1, 6, v0')
    K('v_readfirstlane_b32 s3, v1')
    K('v_and_b32 v1, 63, v0')
    K('v_lshlrev_b32 v1, 4, v1')
    K('s_and_b32 s33, s2, 7')
    K('s_lshr_b32 s34, s2, 3')
    K.wait(lg=0)
    srd(K, S_WS, 4, WS_BYTES)
    return f_end


def load_frags(K, dst, n, sbase, stmp, kind='v', stride=4):
    out = []
    for i in range(n):
        if i % 4 == 0:
            if i == 0:
                cur = sbase
            else:
                K('s_add_u32 s%d, s%d, %d' % (stmp, sbase, 1024 * i))
                cur = stmp
        out.append(K('buffer_load_dwordx4 %s, v1, s[8:11], s%d offen offset:%d' % (vr(dst + stride * i, 4, kind), cur, 1024 * (i % 4))))
    return out


def dma_frags(K, n, smem, slds, stmp):
    out = []
    for i in range(n):
        if i % 4 == 0:
            K('s_add_u32 m0, s%d, %d' % (slds, 1024 * i))
            if i == 0:
                cur = smem
            else:
                K('s_add_u32 s%d, s%d, %d' % (stmp, smem, 1024 * i))
                cur = stmp
        out.append(K('buffer_load_dwordx4 v1, s[8:11], s%d offen offset:%d lds' % (cur, 1024 * (i % 4))))
    return out


def softmax_pair(K, X, T, OUTP, OUTN, s_up):
    mx, mn, t0, t1, bp, bn = T, T + 1, T + 2, T + 3, T + 4, T + 5
    E = T + 8
    for (d, op3, op2) in ((mx, 'v_max3_f32', 'v_max_f32'), (mn, 'v_min3_f32', 'v_min_f32')):
        t = t0 if d == mx else t1
        K('%s v%d, v%d, v%d, v%d' % (op3, d, X, X + 1, X + 2))
        K('%s v%d, v%d, v%d, v%d' % (op3, t, X + 12, X + 13, X + 14))
        for i in range(3, 11, 2):
            K('%s v%d, v%d, v%d, v%d' % (op3, d, d, X + i, X + i + 1))
        K('%s v%d, v%d, v%d' % (op2, t, t, X + 15))
        K('%s v%d, v%d, v%d' % (op2, d, d, X + 11))
        K('v_cndmask_b32 v%d, v%d, v%d, s[%d:%d]' % (t, t, d, s_up, s_up + 1))
        K('%s v%d, v%d, v%d' % (op2, d, d, t))
    K('v_mov_b32 v%d, v%d' % (t0, mx))
    K('v_mov_b32 v%d, v%d' % (t1, mn))
    K('v_permlane32_swap_b32 v%d, v%d' % (mx, t0))
    K('v_permlane32_swap_b32 v%d, v%d' % (mn, t1))
    K('v_max_f32 v%d, v%d, v%d' % (mx, mx, t0))
    K('v_min_f32 v%d, v%d, v%d' % (mn, mn, t1))
    K('v_mul_f32 v%d, 0x%x, v%d' % (mx, LOG2E | 0x80000000, mx))
    K('v_mul_f32 v%d, 0x%x, v%d' % (mn, LOG2E, mn))
    K('v_mov_b32 v%d, 0xff800000' % t0)
    K('v_cndmask_b32 v%d, v%d, v%d, s[%d:%d]' % (bp, mx, t0, s_up, s_up + 1))
    K('v_cndmask_b32 v%d, v%d, v%d, s[%d:%d]' % (bn, mn, t0, s_up, s_up + 1))
    for i in range(16):
        K('v_fma_f32 v%d, v%d, s40, v%d' % (E + i, X + i, bp if i >= 12 else mx))
        K('v_fma_f32 v%d, -v%d, s40, v%d' % (E + 16 + i, X + i, bn if i >= 12 else mn))
    for i in range(32):
        K('v_exp_f32 v%d, v%d' % (E + i, E + i))
    sp, sn = T, T + 2
    for (s, b) in ((sp, E), (sn, E + 16)):
        K('v_pk_add_f32 v[%d:%d], v[%d:%d], v[%d:%d]' % (s, s + 1, b, b + 1, b + 2, b + 3))
    for i in range(4, 16, 2):
        for (s, b) in ((sp, E), (sn, E + 16)):
            K('v_pk_add_f32 v[%d:%d], v[%d:%d], v[%d:%d]' % (s, s + 1, s, s + 1, b + i, b + i + 1))
    for s in (sp, sn):
        K('v_add_f32 v%d, v%d, v%d' % (s, s, s + 1))
    for s in (sp, sn):
        K('v_mov_b32 v%d, v%d' % (s + 1, s))
    for s in (sp, sn):
        K('v_permlane32_swap_b32 v%d, v%d' % (s, s + 1))
    for s in (sp, sn):
        K('v_add_f32 v%d, v%d, v%d' % (s, s, s + 1))
    for s in (sp, sn):
        K('v_rcp_f32 v%d, v%d' % (s, s))
    for s in (sp, sn):
        K('v_mov_b32 v%d, v%d' % (s + 1, s))
    for i in range(8):
        for (s, b, o) in ((sp, E, OUTP), (sn, E + 16, OUTN)):
            K('v_pk_mul_f32 v[%d:%d], v[%d:%d], v[%d:%d]' % (b + 2 * i, b + 2 * i + 1, b + 2 * i, b + 2 * i + 1, s, s + 1))
        for (s, b, o) in ((sp, E, OUTP), (sn, E + 16, OUTN)):
            K('v_cvt_pk_bf16_f32 v%d, v%d, v%d' % (o + i, b + 2 * i, b + 2 * i + 1))


def cvt16(K, dst, src):
    for i in range(8):
        K('v_cvt_pk_bf16_f32 v%d, v%d, v%d' % (dst + i, src + 2 * i, src + 2 * i + 1))


MF = 'v_mfma_f32_32x32x16_bf16'


def k1_qkv():
    K = Kern('qkv_kernel')
    pf = Prof(K, 1)
    pf.stamp()
    f_end = common_head(K, 256)
    LP = 86016
    K('s_lshl_b32 s35, s33, 1')
    K('s_lshr_b32 s36, s34, 4')
    K('s_add_u32 s35, s35, s36')
    K('s_and_b32 s36, s34, 15')
    K('s_lshl_b32 s37, s35, 2')
    K('s_add_u32 s37, s37, s3')
    XF, AQ, AK, AV, AB, PB, T, WPF = 16, 128, 144, 160, 176, 200, 232, 248
    K('s_lshl_b32 s38, s3, 10')
    K('s_add_u32 m0, s38, %d' % LP)
    K('s_add_u32 s38, s38, 0x%x' % P1)
    K('buffer_load_dwordx4 v1, s[8:11], s38 offen lds')
    K('s_mul_i32 s38, s3, %d' % (21 * 1024))
    K('s_mul_i32 s39, s36, 86016')
    K('s_add_u32 s39, s39, s38')
    K('s_add_u32 s39, s39, 0x%x' % WQ)
    dm = dma_frags(K, 21, 39, 38, 41)
    K('s_mul_i32 s39, s37, 28672')
    K('s_add_u32 s39, s39, 0x%x' % XH)
    load_frags(K, XF, 28, 39, 41)
    K('s_lshl_b32 s39, s36, 11')
    K('s_add_u32 s39, s39, 0x%x' % WP)
    load_frags(K, WPF, 2, 39, 41)
    K('s_mov_b32 s40, 0x%x' % LOG2E)
    K('v_and_b32 v2, 31, v0')
    K('v_bfe_u32 v3, v0, 5, 1')
    K('v_cmp_eq_u32 s[42:43], 1, v3')
    K('v_cmp_eq_u32 s[44:45], 28, v2')
    K('v_lshlrev_b32 v4, 6, v3')
    K('v_add_u32 v4, %d, v4' % LP)
    K('v_lshlrev_b32 v5, 2, v3')
    K('v_sub_u32 v5, v2, v5')
    K('v_mov_b32 v7, 0x3f80')
    for i in range(8):
        c = 16 * (i >> 2) + 8 * ((i >> 1) & 1) + 2 * (i & 1)
        K('v_subrev_u32 v6, %d, v5' % c)
        K('v_cmp_gt_u32 vcc, 2, v6')
        K('v_lshlrev_b32 v6, 4, v6')
        K('v_lshlrev_b32 v6, v6, v7')
        K('v_cndmask_b32 v%d, 0, v6, vcc' % (8 + i))
    K.wait_for(dm[-1])
    K('s_barrier')
    pf.stamp()

    def rd_a(t):
        b = AB + 12 * (t & 1)
        return ['ds_read_b128 v[%d:%d], v1 offset:%d' % (b + 4 * p, b + 4 * p + 3, (3 * t + p) * 1024) if (3 * t + p) * 1024 < 65536 else
                'ds_read_b128 v[%d:%d], v5 offset:%d' % (b + 4 * p, b + 4 * p + 3, (3 * t + p) * 1024 - 65536) for p in range(3)]

    def rd_p(t):
        b = PB + 16 * (t & 1)
        return ['ds_read_b128 v[%d:%d], v4 offset:%d' % (b + 4 * i, b + 4 * i + 3, 128 * t + 16 * i) for i in range(4)]

    def mk_h(t):
        b = PB + 16 * (t & 1)
        o = []
        for i in range(4):
            x = XF + 4 * t + i
            tt = T + 2 * i
            o += ['v_lshlrev_b32 v%d, 16, v%d' % (tt, x), 'v_and_b32 v%d, 0xffff0000, v%d' % (tt + 1, x)]
        for i in range(4):
            tt = T + 2 * i
            o += ['v_pk_fma_f32 v[%d:%d], v[%d:%d], v[%d:%d], v[%d:%d]' % (tt, tt + 1, tt, tt + 1, b + 2 * i, b + 2 * i + 1, b + 8 + 2 * i, b + 9 + 2 * i)]
        for i in range(4):
            tt = T + 2 * i
            o += ['v_cvt_pk_bf16_f32 v%d, v%d, v%d' % (XF + 4 * t + i, tt, tt + 1)]
        return o
    K('v_add_u32 v5, 0x10000, v1')
    for s in rd_p(0) + rd_a(0) + rd_p(1) + mk_h(0):
        K(s)
    for t in range(28):
        b = AB + 12 * (t & 1)
        h = vr(XF + 4 * t, 4)
        c = (lambda a: '0' if t == 0 else vr(a, 16))
        mf = ['%s %s, %s, %s, %s' % (MF, vr(AQ, 16), vr(b, 4), h, c(AQ)),
              '%s %s, %s, %s, %s' % (MF, vr(AK, 16), vr(b + 4, 4), h, c(AK)),
              '%s %s, %s, %s, %s' % (MF, vr(AV, 16), h, vr(b + 8, 4), c(AV))]
        fill = []
        if t + 1 < 28:
            fill += rd_a(t + 1) + mk_h(t + 1)
        if t + 2 < 28:
            fill += rd_p(t + 2)
        weave(K, mf, fill)
    pf.stamp()
    QB, KB, VB = 16, 24, 32
    PQ, PK = 40, 56
    FQ, FK = 72, 88
    TT = 176
    cvt16(K, KB, AK)
    cvt16(K, QB, AQ)
    K('%s %s, %s, %s, 0' % (MF, vr(PK, 16), vr(WPF, 4), vr(KB, 4)))
    K('%s %s, %s, %s, 0' % (MF, vr(PQ, 16), vr(WPF, 4), vr(QB, 4)))
    K('%s %s, %s, %s, %s' % (MF, vr(PK, 16), vr(WPF + 4, 4), vr(KB + 4, 4), vr(PK, 16)))
    K('%s %s, %s, %s, %s' % (MF, vr(PQ, 16), vr(WPF + 4, 4), vr(QB + 4, 4), vr(PQ, 16)))
    cvt16(K, VB, AV)
    K('v_mov_b32 v6, 0x3f803f80')
    for i in range(8):
        K('v_cndmask_b32 v%d, v%d, v6, s[44:45]' % (VB + i, VB + i))
    softmax_pair(K, PK, TT, FK, FK + 8, 42)
    TP, TN = AQ, AK
    for (d, src) in ((TP, FK), (TN, FK + 8)):
        K('%s %s, %s, %s, 0' % (MF, vr(d, 16), vr(src, 4), vr(8, 4)))
    for (d, src) in ((TP, FK), (TN, FK + 8)):
        K('%s %s, %s, %s, %s' % (MF, vr(d, 16), vr(src + 4, 4), vr(12, 4), vr(d, 16)))
    softmax_pair(K, PQ, TT, FQ, FQ + 8, 42)
    K('s_lshl_b32 s39, s37, 4')
    K('s_add_u32 s39, s39, s36')
    K('s_lshl_b32 s39, s39, 12')
    K('s_add_u32 s39, s39, 0x%x' % PHIQ)
    for i in range(4):
        K('buffer_store_dwordx4 %s, v1, s[8:11], s39 offen offset:%d' % (vr(FQ + 4 * i, 4), 1024 * i))
    cvt16(K, FK, TP)
    cvt16(K, FK + 8, TN)
    KP, KN = PK, PQ
    for (d, src) in ((KP, FK), (KN, FK + 8)):
        K('%s %s, %s, %s, 0' % (MF, vr(d, 16), vr(src, 4), vr(VB, 4)))
    for (d, src) in ((KP, FK), (KN, FK + 8)):
        K('%s %s, %s, %s, %s' % (MF, vr(d, 16), vr(src + 4, 4), vr(VB + 4, 4), vr(d, 16)))
    pf.stamp()
    K('s_barrier')
    K('s_lshl_b32 s38, s3, 13')
    K('v_add_u32 v6, s38, v1')
    for s, d in enumerate((KP, KN)):
        for q in range(4):
            K('ds_write_b128 v6, %s offset:%d' % (vr(d + 4 * q, 4), (4 * s + q) * 1024))
    K.wait(lg=0)
    K('s_barrier')
    K('s_lshl_b32 s38, s3, 11')
    K('v_lshrrev_b32 v6, 2, v1')
    K('v_add_u32 v6, s38, v6')
    R = 104
    for i in range(8):
        K('ds_read2st64_b32 v[%d:%d], v6 offset0:%d offset1:%d' % (R + 4 * i, R + 4 * i + 1, i, 32 + i))
        K('ds_read2st64_b32 v[%d:%d], v6 offset0:%d offset1:%d' % (R + 4 * i + 2, R + 4 * i + 3, 64 + i, 96 + i))
    K('s_lshl_b32 s39, s36, 13')
    K('s_add_u32 s39, s39, 0x%x' % KV)
    for i in range(8):
        K('v_pk_add_f32 v[%d:%d], v[%d:%d], v[%d:%d]' % (R + 4 * i, R + 4 * i + 1, R + 4 * i, R + 4 * i + 1, R + 4 * i + 2, R + 4 * i + 3))
        K('v_add_f32 v%d, v%d, v%d' % (R + 4 * i, R + 4 * i, R + 4 * i + 1))
        K('buffer_atomic_add_f32 v%d, v6, s[8:11], s39 offen offset:%d' % (R + 4 * i, 256 * i))
    if PROF:
        K.wait(vm=0)
    pf.flush(3, 2)
    K.end()
    K.resume(f_end)
    K.end()
    return K, (256, 256, LP + 4096)


def k2_attn():
    K = Kern('attn_kernel')
    pf = Prof(K, 2)
    pf.stamp()
    f_end = common_head(K, 256, ['s_load_dwordx2 s[6:7], s[0:1], %d' % A_X])
    srd(K, 12, 6, 2048 * 896)
    K('s_lshl_b32 s35, s33, 3')
    K('s_lshr_b32 s36, s34, 2')
    K('s_add_u32 s35, s35, s36')
    K('s_and_b32 s36, s34, 3')
    KVF, PH, WF, XR, GR, ACC, T = 16, 80, 112, 176, 184, 200, 232
    K('s_lshl_b32 s38, s3, 14')
    K('s_add_u32 s38, s38, 0x%x' % KV)
    K('s_lshl_b32 s39, s35, 16')
    K('s_lshl_b32 s40, s3, 13')
    K('s_add_u32 s39, s39, s40')
    K('s_add_u32 s39, s39, 0x%x' % PHIQ)
    load_frags(K, KVF, 8, 38, 41)
    load_frags(K, PH, 4, 39, 41)
    K('s_add_u32 s38, s38, 8192')
    K('s_add_u32 s39, s39, 4096')
    load_frags(K, KVF + 32, 8, 38, 41)
    load_frags(K, PH + 16, 4, 39, 41)
    K('s_and_b32 s42, s3, 3')
    K('s_lshr_b32 s43, s3, 2')
    K('s_lshl_b32 s44, s36, 2')
    K('s_cmp_eq_u32 s36, 3')
    K('s_cselect_b32 s45, 1, 0')
    K('s_sub_u32 s44, s44, s45')
    K('s_add_u32 s44, s44, s42')
    K('s_lshr_b32 s45, s36, 1')
    K('s_add_u32 s45, s45, s42')
    K('v_and_b32 v2, 31, v0')
    K('v_bfe_u32 v3, v0, 5, 1')
    K('s_cmp_lt_u32 s45, 4')
    L = K.skip_begin('s_cbranch_scc0')
    K('s_lshl_b32 s38, s44, 15')
    K('s_lshl_b32 s39, s43, 14')
    K('s_add_u32 s38, s38, s39')
    K('s_add_u32 s38, s38, 0x%x' % WO)
    load_frags(K, WF, 16, 38, 41)
    K('v_mul_u32_u24 v4, 896, v2')
    K('v_lshl_add_u32 v4, v3, 3, v4')
    K('s_mul_i32 s38, s35, 28672')
    K('s_lshl_b32 s39, s44, 6')
    K('s_add_u32 s38, s38, s39')
    for q in range(4):
        K('buffer_load_dwordx2 %s, v4, s[12:15], s38 offen offset:%d' % (vr(XR + 2 * q, 2), 16 * q))
    K('v_lshlrev_b32 v5, 6, v3')
    K('s_lshl_b32 s38, s44, 7')
    K('s_add_u32 s38, s38, 0x%x' % GA)
    for q in range(4):
        K('buffer_load_dwordx4 %s, v5, s[8:11], s38 offen offset:%d' % (vr(GR + 4 * q, 4), 16 * q))
    K.skip_end(L)
    K('s_lshl_b32 s38, s3, 12')
    K('v_add_u32 v6, s38, v1')
    for hh in range(2):
        src = KVF + 32 * hh
        for i in range(16):
            K('v_cvt_pk_bf16_f32 v%d, v%d, v%d' % (src + i, src + 2 * i, src + 2 * i + 1))
        a = ACC + 16 * hh
        for i in range(4):
            K('%s %s, %s, %s, %s' % (MF, vr(a, 16), vr(src + 4 * i, 4), vr(PH + 16 * hh + 4 * i, 4), '0' if i == 0 else vr(a, 16)))
    pf.stamp()
    for hh in range(2):
        a = ACC + 16 * hh
        t = T + 2 * hh
        K('v_mov_b32 v%d, v%d' % (t, a + 12))
        K('v_permlane32_swap_b32 v%d, v%d' % (a + 12, t))
        K('v_add_f32 v%d, 0x%x, v%d' % (t, 0x358637bd, t))
        K('v_rcp_f32 v%d, v%d' % (t, t))
        K('v_mov_b32 v%d, v%d' % (t + 1, t))
        o = KVF + 32 * hh
        for i in range(8):
            K('v_pk_mul_f32 v[%d:%d], v[%d:%d], v[%d:%d]' % (a + 2 * i, a + 2 * i + 1, a + 2 * i, a + 2 * i + 1, t, t + 1))
            K('v_cvt_pk_bf16_f32 v%d, v%d, v%d' % (o + i, a + 2 * i, a + 2 * i + 1))
        K('ds_write_b128 v6, %s offset:%d' % (vr(o, 4), 2048 * hh))
        K('ds_write_b128 v6, %s offset:%d' % (vr(o + 4, 4), 2048 * hh + 1024))
    K.wait(lg=0)
    K('s_barrier')
    pf.stamp()
    K('s_cmp_lt_u32 s45, 4')
    L = K.skip_begin('s_cbranch_scc0')
    K('s_lshl_b32 s38, s43, 14')
    K('v_add_u32 v6, s38, v1')
    OB = 16
    for i in range(16):
        K('ds_read_b128 %s, v6 offset:%d' % (vr(OB + 4 * i, 4), 1024 * i))
    for i in range(16):
        a = ACC + 16 * (i & 1)
        K('%s %s, %s, %s, %s' % (MF, vr(a, 16), vr(WF + 4 * i, 4), vr(OB + 4 * i, 4), '0' if i < 2 else vr(a, 16)))
    for i in range(8):
        K('v_pk_add_f32 v[%d:%d], v[%d:%d], v[%d:%d]' % (ACC + 2 * i, ACC + 2 * i + 1, ACC + 2 * i, ACC + 2 * i + 1, ACC + 16 + 2 * i, ACC + 17 + 2 * i))
    K('s_lshl_b32 s38, s42, 12')
    K('s_add_u32 s38, s38, 32768')
    K('v_add_u32 v6, s38, v1')
    K('s_cmp_eq_u32 s43, 1')
    L2 = K.skip_begin('s_cbranch_scc0')
    for q in range(4):
        K('ds_write_b128 v6, %s offset:%d' % (vr(ACC + 4 * q, 4), 1024 * q))
    K.skip_end(L2)
    K.skip_end(L)
    K.wait(lg=0)
    K('s_barrier')
    pf.stamp()
    K('s_lshl_b32 s38, s43, 2')
    K('s_add_u32 s38, s38, s45')
    K('s_cmp_lt_u32 s38, 4')
    L = K.skip_begin('s_cbranch_scc0')
    for q in range(4):
        K('ds_read_b128 %s, v6 offset:%d' % (vr(ACC + 16 + 4 * q, 4), 1024 * q))
    U = 16
    for i in range(8):
        unpack(K, U + 2 * i, U + 2 * i + 1, XR + i)
    for i in range(8):
        K('v_pk_add_f32 v[%d:%d], v[%d:%d], v[%d:%d]' % (ACC + 2 * i, ACC + 2 * i + 1, ACC + 2 * i, ACC + 2 * i + 1, ACC + 16 + 2 * i, ACC + 17 + 2 * i))
        K('v_pk_fma_f32 v[%d:%d], v[%d:%d], v[%d:%d], v[%d:%d]' % (U + 2 * i, U + 2 * i + 1, ACC + 2 * i, ACC + 2 * i + 1, GR + 2 * i, GR + 2 * i + 1, U + 2 * i, U + 2 * i + 1))
    O = 40
    cvt16(K, O, U)
    K('s_mul_i32 s38, s35, 28672')
    K('s_lshl_b32 s39, s44, 11')
    K('s_add_u32 s38, s38, s39')
    K('s_add_u32 s38, s38, 0x%x' % X1)
    K('buffer_store_dwordx4 %s, v1, s[8:11], s38 offen' % vr(O, 4))
    K('buffer_store_dwordx4 %s, v1, s[8:11], s38 offen offset:1024' % vr(O + 4, 4))
    for i in range(8):
        unpack(K, U + 2 * i, U + 2 * i + 1, O + i)
    K('v_pk_add_f32 v[50:51], v[%d:%d], v[%d:%d]' % (U, U + 1, U + 2, U + 3))
    K('v_pk_mul_f32 v[52:53], v[%d:%d], v[%d:%d]' % (U, U + 1, U, U + 1))
    for i in range(1, 8):
        if i > 1:
            K('v_pk_add_f32 v[50:51], v[50:51], v[%d:%d]' % (U + 2 * i, U + 2 * i + 1))
        K('v_pk_fma_f32 v[52:53], v[%d:%d], v[%d:%d], v[52:53]' % (U + 2 * i, U + 2 * i + 1, U + 2 * i, U + 2 * i + 1))
    K('v_add_f32 v50, v50, v51')
    K('v_add_f32 v51, v52, v53')
    K('s_mul_i32 s38, s35, 7168')
    K('s_lshr_b32 s39, s44, 1')
    K('s_lshl_b32 s39, s39, 10')
    K('s_add_u32 s38, s38, s39')
    K('s_and_b32 s39, s44, 1')
    K('s_lshl_b32 s39, s39, 3')
    K('s_add_u32 s38, s38, s39')
    K('s_add_u32 s38, s38, 0x%x' % STATS)
    K('buffer_store_dwordx2 v[50:51], v1, s[8:11], s38 offen')
    K.skip_end(L)
    pf.flush(3, 2)
    K.end()
    K.resume(f_end)
    K.end()
    return K, (256, 512, 32768 + 16384)


def k3_glu():
    K = Kern('glu_kernel')
    pf = Prof(K, 3)
    pf.stamp()
    f_end = common_head(K, 256)
    CH = 28672
    LP = 5 * CH
    K('s_lshl_b32 s35, s33, 1')
    K('s_lshr_b32 s36, s34, 4')
    K('s_add_u32 s35, s35, s36')
    K('s_and_b32 s36, s34, 15')
    K('s_lshl_b32 s37, s35, 2')
    K('s_add_u32 s37, s37, s3')
    XF, AB, PB, T, ST = 16, 128, 184, 216, 224
    K('s_lshl_b32 s38, s3, 10')
    K('s_add_u32 m0, s38, %d' % LP)
    K('s_add_u32 s38, s38, 0x%x' % P2)
    K('buffer_load_dwordx4 v1, s[8:11], s38 offen lds')
    K('s_mul_i32 s38, s37, 7168')
    K('s_add_u32 s38, s38, 0x%x' % STATS)
    load_frags(K, ST, 7, 38, 41)
    K('s_mul_i32 s42, s3, 7168')
    K('s_mul_i32 s43, s36, %d' % (196 * 1024))
    K('s_add_u32 s43, s43, s42')
    K('s_add_u32 s43, s43, 0x%x' % WGU)
    K('s_mul_i32 s44, s37, 28672')
    K('s_add_u32 s44, s44, 0x%x' % X1)
    dm = {}

    def chunk(c):
        K('s_add_u32 s45, s43, %d' % (c * CH))
        K('s_add_u32 s46, s42, %d' % ((c % 5) * CH))
        dm[c] = dma_frags(K, 7, 45, 46, 41)
    for c in range(5):
        chunk(c)
        if c < 5:
            n = 4 if c < 4 else 12
            K('s_add_u32 s45, s44, %d' % (4096 * c))
            load_frags(K, XF + 16 * c, n, 45, 41)
    K('v_bfe_u32 v3, v0, 5, 1')
    K('v_lshlrev_b32 v4, 6, v3')
    K('v_add_u32 v4, %d, v4' % LP)
    K('v_add_u32 v5, 0x10000, v1')
    K('v_add_u32 v6, 0x20000, v1')
    for i in range(1, 7):
        K('v_pk_add_f32 v[%d:%d], v[%d:%d], v[%d:%d]' % (ST, ST + 1, ST, ST + 1, ST + 4 * i, ST + 4 * i + 1))
        K('v_pk_add_f32 v[%d:%d], v[%d:%d], v[%d:%d]' % (ST + 2, ST + 3, ST + 2, ST + 3, ST + 4 * i + 2, ST + 4 * i + 3))
    K('v_pk_add_f32 v[%d:%d], v[%d:%d], v[%d:%d]' % (ST, ST + 1, ST, ST + 1, ST + 2, ST + 3))
    K('v_mov_b32 v%d, v%d' % (ST + 2, ST))
    K('v_mov_b32 v%d, v%d' % (ST + 3, ST + 1))
    K('v_permlane32_swap_b32 v%d, v%d' % (ST, ST + 2))
    K('v_permlane32_swap_b32 v%d, v%d' % (ST + 1, ST + 3))
    K('v_pk_add_f32 v[%d:%d], v[%d:%d], v[%d:%d]' % (ST, ST + 1, ST, ST + 1, ST + 2, ST + 3))
    K('v_mul_f32 v10, 0x3b124925, v%d' % ST)
    K('v_mov_b32 v8, 0x3727c5ac')
    K('v_fmac_f32 v8, 0x3b124925, v%d' % (ST + 1))
    K('v_fma_f32 v9, -v10, v10, v8')
    K('v_mov_b32 v8, 0x3727c5ac')
    K('v_max_f32 v9, v9, v8')
    K('v_rsq_f32 v8, v9')
    K('v_mul_f32 v10, -1.0, v10')
    K('v_mov_b32 v9, v8')
    K('v_mul_f32 v10, v10, v8')
    K('v_mov_b32 v11, v10')

    def rd_a(t):
        b = AB + 28 * (t & 1)
        o = []
        for m in range(7):
            off = ((t // 4) % 5) * CH + ((t % 4) * 7 + m) * 1024
            base = (1, 5, 6)[off >> 16]
            o.append('ds_read_b128 v[%d:%d], v%d offset:%d' % (b + 4 * m, b + 4 * m + 3, base, off & 0xffff))
        return o

    def rd_p(t):
        b = PB + 16 * (t & 1)
        return ['ds_read_b128 v[%d:%d], v4 offset:%d' % (b + 4 * i, b + 4 * i + 3, 128 * t + 16 * i) for i in range(4)]

    def mk_h(t):
        b = PB + 16 * (t & 1)
        o = []
        for i in range(4):
            x = XF + 4 * t + i
            tt = T + 2 * i
            o += ['v_lshlrev_b32 v%d, 16, v%d' % (tt, x), 'v_and_b32 v%d, 0xffff0000, v%d' % (tt + 1, x)]
        for i in range(4):
            tt = T + 2 * i
            o += ['v_pk_fma_f32 v[%d:%d], v[%d:%d], v[8:9], v[10:11]' % (tt, tt + 1, tt, tt + 1)]
        for i in range(4):
            tt = T + 2 * i
            o += ['v_pk_fma_f32 v[%d:%d], v[%d:%d], v[%d:%d], v[%d:%d]' % (tt, tt + 1, tt, tt + 1, b + 2 * i, b + 2 * i + 1, b + 8 + 2 * i, b + 9 + 2 * i)]
        for i in range(4):
            tt = T + 2 * i
            o += ['v_cvt_pk_bf16_f32 v%d, v%d, v%d' % (XF + 4 * t + i, tt, tt + 1)]
        return o
    K.wait_for(dm[0][-1])
    K('s_barrier')
    pf.stamp()
    for s in rd_p(0) + rd_a(0) + rd_p(1) + mk_h(0):
        K(s)
    for t in range(28):
        if (t + 1) % 4 == 0 and t + 1 < 28:
            c = (t + 1) // 4
            K.wait_for(dm[c][-1])
            K('s_barrier')
            if c in (2, 3):
                chunk(c + 3)
        b = AB + 28 * (t & 1)
        h = vr(XF + 4 * t, 4)
        mf = ['%s %s, %s, %s, %s' % (MF, ar(16 * m, 16), vr(b + 4 * m, 4), h, '0' if t == 0 else ar(16 * m, 16)) for m in range(7)]
        fill = []
        if t + 1 < 28:
            fill += rd_a(t + 1) + mk_h(t + 1)
        if t + 2 < 28:
            fill += rd_p(t + 2)
        weave(K, mf, fill)
    pf.stamp()
    K('s_mul_i32 s38, s37, %d' % (112 * 1024))
    K('s_mul_i32 s39, s36, 7168')
    K('s_add_u32 s38, s38, s39')
    K('s_add_u32 s38, s38, 0x%x' % HH)
    K('s_add_u32 s39, s38, 4096')
    for m in range(7):
        g = 16 + 16 * m
        for i in range(16):
            K('v_accvgpr_read_b32 v%d, a%d' % (g + i, 16 * m + i))
        for i in range(4):
            K('v_pk_mul_f32 v[%d:%d], v[%d:%d], v[%d:%d]' % (g + 2 * i, g + 2 * i + 1, g + 2 * i, g + 2 * i + 1, g + 8 + 2 * i, g + 9 + 2 * i))
        for i in range(4):
            K('v_cvt_pk_bf16_f32 v%d, v%d, v%d' % (g + 8 + i, g + 2 * i, g + 2 * i + 1))
        K('buffer_store_dwordx4 %s, v1, s[8:11], s%d offen offset:%d' % (vr(g + 8, 4), 38 + m // 4, 1024 * (m % 4)))
    if PROF:
        K.wait(vm=0)
    pf.flush(3, 2)
    K.end()
    K.resume(f_end)
    K.end()
    return K, (256, 256, LP + 4096)


def k4_down():
    K = Kern('down_kernel')
    pf = Prof(K, 4)
    pf.stamp()
    f_end = common_head(K, 224, ['s_load_dwordx2 s[6:7], s[0:1], %d' % A_OUT])
    srd(K, 12, 6, 2048 * 896)
    K('s_mul_i32 s35, s34, 9363')
    K('s_lshr_b32 s35, s35, 16')
    K('s_mul_i32 s36, s35, 7')
    K('s_sub_u32 s36, s34, s36')
    K('s_lshl_b32 s37, s33, 2')
    K('s_add_u32 s35, s35, s37')
    RING, DEP = 16, 14
    XR, GR = 240, 0
    K('s_mul_i32 s38, s36, %d' % (112 * 2048))
    K('s_mul_i32 s39, s3, %d' % (28 * 2048))
    K('s_add_u32 s38, s38, s39')
    K('s_add_u32 s38, s38, 0x%x' % WD)
    K('s_mul_i32 s39, s35, %d' % (2 * 112 * 1024))
    K('s_mul_i32 s40, s3, %d' % (28 * 1024))
    K('s_add_u32 s39, s39, s40')
    K('s_add_u32 s39, s39, 0x%x' % HH)
    K('s_add_u32 s40, s39, %d' % (112 * 1024))

    def loads(t):
        b = RING + 16 * (t % DEP)
        o = []
        if t % 2 == 0 and t:
            o.append('s_add_u32 s38, s38, 4096')
        if t % 4 == 0 and t:
            o.append('s_add_u32 s39, s39, 4096')
            o.append('s_add_u32 s40, s40, 4096')
        o.append('buffer_load_dwordx4 %s, v1, s[8:11], s38 offen offset:%d' % (vr(b, 4), 2048 * (t % 2)))
        o.append('buffer_load_dwordx4 %s, v1, s[8:11], s39 offen offset:%d' % (vr(b + 8, 4), 1024 * (t % 4)))
        o.append('buffer_load_dwordx4 %s, v1, s[8:11], s38 offen offset:%d' % (vr(b + 4, 4), 2048 * (t % 2) + 1024))
        o.append('buffer_load_dwordx4 %s, v1, s[8:11], s40 offen offset:%d' % (vr(b + 12, 4), 1024 * (t % 4)))
        return o
    for t in range(DEP):
        for s in loads(t):
            K(s)
    K('s_and_b32 s42, s3, 1')
    K('s_lshr_b32 s43, s3, 1')
    K('s_lshl_b32 s44, s36, 1')
    K('s_add_u32 s44, s44, s42')
    K('s_lshl_b32 s45, s35, 1')
    K('s_add_u32 s45, s45, s43')
    K('v_and_b32 v2, 31, v0')
    K('v_bfe_u32 v3, v0, 5, 1')
    K('v_lshlrev_b32 v5, 6, v3')
    K('v_mul_u32_u24 v4, 896, v2')
    K('v_lshl_add_u32 v4, v3, 4, v4')
    for t in range(28):
        b = RING + 16 * (t % DEP)
        for ni in range(2):
            for mi in range(2):
                a = ar(16 * (2 * ni + mi), 16)
                K('%s %s, %s, %s, %s' % (MF, a, vr(b + 4 * mi, 4), vr(b + 8 + 4 * ni, 4), '0' if t == 0 else a))
        if t == 0:
            pf.stamp()
        if t + DEP < 28:
            for s in loads(t + DEP):
                K(s)
        if t == 14:
            K('s_mul_i32 s46, s45, 28672')
            K('s_lshl_b32 s47, s44, 11')
            K('s_add_u32 s46, s46, s47')
            K('s_add_u32 s46, s46, 0x%x' % X1)
            load_frags(K, XR, 2, 46, 41)
            K('s_lshl_b32 s46, s44, 7')
            K('s_add_u32 s46, s46, 0x%x' % GB)
            for q in range(4):
                K('buffer_load_dwordx4 %s, v5, s[8:11], s46 offen offset:%d' % (ar(64 + 4 * q, 4), 16 * q))
    pf.stamp()
    K('s_lshl_b32 s46, s3, 14')
    K('v_add_u32 v6, s46, v1')
    for tl in range(4):
        K('s_cmp_lg_u32 s3, %d' % tl)
        L = K.skip_begin('s_cbranch_scc0')
        for q in range(4):
            K('ds_write_b128 v6, %s offset:%d' % (ar(16 * tl + 4 * q, 4), 4096 * tl + 1024 * q))
        K.skip_end(L)
    for tl in range(4):
        K('s_cmp_eq_u32 s3, %d' % tl)
        L = K.skip_begin('s_cbranch_scc0')
        for i in range(16):
            K('v_accvgpr_read_b32 v%d, a%d' % (16 + i, 16 * tl + i))
        K.skip_end(L)
    K.wait(lg=0)
    K('s_barrier')
    K('s_lshl_b32 s46, s3, 12')
    K('v_add_u32 v6, s46, v1')
    for k in range(1, 4):
        K('s_add_u32 s46, s3, %d' % k)
        K('s_and_b32 s46, s46, 3')
        K('s_lshl_b32 s46, s46, 14')
        K('v_add_u32 v7, s46, v6')
        for q in range(4):
            K('ds_read_b128 %s, v7 offset:%d' % (vr(16 + 16 * k + 4 * q, 4), 1024 * q))
    U, G = 96, 112
    for i in range(8):
        unpack(K, U + 2 * i, U + 2 * i + 1, XR + i)
    for i in range(16):
        K('v_accvgpr_read_b32 v%d, a%d' % (G + i, 64 + i))
    for k in range(1, 4):
        for i in range(8):
            K('v_pk_add_f32 v[%d:%d], v[%d:%d], v[%d:%d]' % (16 + 2 * i, 17 + 2 * i, 16 + 2 * i, 17 + 2 * i, 16 + 16 * k + 2 * i, 17 + 16 * k + 2 * i))
    for i in range(8):
        K('v_pk_fma_f32 v[%d:%d], v[%d:%d], v[%d:%d], v[%d:%d]' % (U + 2 * i, U + 2 * i + 1, 16 + 2 * i, 17 + 2 * i, G + 2 * i, G + 2 * i + 1, U + 2 * i, U + 2 * i + 1))
    O = 80
    cvt16(K, O, U)
    for b in (0, 4):
        K('v_permlane32_swap_b32 v%d, v%d' % (O + b, O + b + 2))
        K('v_permlane32_swap_b32 v%d, v%d' % (O + b + 1, O + b + 3))
    K('s_mul_i32 s46, s45, 28672')
    K('s_lshl_b32 s47, s44, 6')
    K('s_add_u32 s46, s46, s47')
    K('buffer_store_dwordx4 %s, v4, s[12:15], s46 offen' % vr(O, 4))
    K('buffer_store_dwordx4 %s, v4, s[12:15], s46 offen offset:32' % vr(O + 4, 4))
    if PROF:
        K.wait(vm=0)
    pf.flush(3, 2)
    K.end()
    K.resume(f_end)
    K.end()
    return K, (224, 256, 65536)


def main():
    ks = [k0_prep(), k1_qkv(), k2_attn(), k3_glu(), k4_down()]
    hdr = open('cdna_kernels/%s.s.ref' % NAME).read().split('\n')
    out = [l for l in hdr if l.startswith(';') and '@launch' not in l and 'Override launch' not in l and 'grid=ceil' not in l][:14]
    for K, (g, b, lds) in ks:
        out.append('; @launch kernel=%s grid=(%d,1,1) block=(%d,1,1) lds=%d' % (K.name, g, b, lds))
    out += ['.amdgcn_target "amdgcn-amd-amdhsa--gfx950"', '.text']
    for K, _ in ks:
        out.append(K.render())
    out.append('.section .rodata,"a"')
    for K, _ in ks:
        out.append(K.descriptor())
    dst = [a for a in sys.argv[1:] if not a.startswith('--')][0]
    open(dst, 'w').write('\n'.join(out) + '\n')
    for K, l in ks:
        n = sum(isinstance(i, Ins) for i in K.items)
        print(K.name, l, 'v%d a%d s%d' % (K.maxv + 1, K.maxa + 1, K.maxs + 1), 'instrs', n)


main()
```

```python
import re

REG_RE = re.compile(r'\b([vas])(?:\[(\d+):(\d+)\]|(\d+))')
TRANS = ('v_exp_f32', 'v_log_f32', 'v_rcp_f32', 'v_rsq_f32', 'v_sqrt_f32', 'v_sin_f32', 'v_cos_f32', 'v_rcp_iflag_f32')


def regs_of(op):
    out = set()
    op = op.strip()
    for m in REG_RE.finditer(op):
        k = m.group(1)
        if m.group(4) is not None:
            out.add(k + m.group(4))
        else:
            for i in range(int(m.group(2)), int(m.group(3)) + 1):
                out.add(k + str(i))
    for sp in ('vcc', 'exec', 'm0'):
        if re.search(r'\b' + sp + r'(_lo|_hi)?\b', op):
            out.add(sp)
    return out


def split_ops(s):
    ops, depth, cur = [], 0, ''
    for ch in s:
        if ch == '[':
            depth += 1
        if ch == ']':
            depth -= 1
        if ch == ',' and depth == 0:
            ops.append(cur.strip())
            cur = ''
        else:
            cur += ch
    if cur.strip():
        ops.append(cur.strip())
    return ops


class Ins:
    __slots__ = ('text', 'op', 'kind', 'wr', 'rd', 'blk', 'ws', 'srcC', 'srcAB', 'passes', 'dpp', 'store_data', 'lanesel', 'auto')

    def __init__(self, text, blk):
        self.text = text
        self.blk = blk
        self.auto = False
        t = text.split(';')[0].strip()
        parts = t.split(None, 1)
        self.op = parts[0]
        rest = parts[1] if len(parts) > 1 else ''
        op = self.op
        self.ws = 1
        self.srcC = set()
        self.srcAB = set()
        self.passes = 0
        self.dpp = False
        self.store_data = set()
        self.lanesel = set()
        ops = split_ops(rest)
        mods = ''
        if ops:
            last = ops[-1].split(None, 1)
            if len(last) > 1 and not last[0].endswith('('):
                ops[-1] = last[0]
                mods = last[1]
        wr, rd = set(), set()
        if op.startswith('v_mfma'):
            self.kind = 'mfma'
            wr = regs_of(ops[0])
            self.srcAB = regs_of(ops[1]) | regs_of(ops[2])
            self.srcC = regs_of(ops[3])
            rd = self.srcAB | self.srcC
            self.passes = 8 if '32x32x16' in op else 4 if '16x16x32' in op else None
            assert self.passes, op
        elif op.startswith('v_'):
            self.kind = 'trans' if op.replace('_e32', '').replace('_e64', '') in TRANS else 'valu'
            if op.startswith('v_cmp'):
                wr = regs_of(ops[0])
                for o in ops[1:]:
                    rd |= regs_of(o)
            elif op.startswith('v_permlane') and 'swap' in op:
                wr = regs_of(ops[0]) | regs_of(ops[1])
                rd = set(wr)
            elif op.startswith(('v_add_co', 'v_sub_co', 'v_addc_co', 'v_subb_co', 'v_subrev_co', 'v_mad_u64_u32', 'v_div_scale')):
                wr = regs_of(ops[0]) | regs_of(ops[1])
                for o in ops[2:]:
                    rd |= regs_of(o)
            elif op == 'v_nop':
                pass
            else:
                wr = regs_of(ops[0])
                for o in ops[1:]:
                    rd |= regs_of(o)
                if op.startswith(('v_fmac', 'v_dot2c', 'v_writelane', 'v_pk_fmac')) or '_dpp' in op or 'sdwa' in op:
                    rd |= wr
                if op.startswith(('v_readlane', 'v_writelane')):
                    self.lanesel = {r for r in regs_of(ops[2])}
            if '_dpp' in op:
                self.dpp = True
        elif op.startswith('ds_'):
            self.kind = 'ds'
            if op.startswith(('ds_read', 'ds_bpermute', 'ds_permute', 'ds_swizzle')) or 'rtn' in op:
                wr = regs_of(ops[0])
                for o in ops[1:]:
                    rd |= regs_of(o)
            else:
                for o in ops:
                    rd |= regs_of(o)
        elif op.startswith(('buffer_', 'global_', 'flat_')):
            self.kind = 'vmem'
            is_lds = ' lds' in (' ' + mods) or 'load_lds' in op
            if op in ('buffer_inv', 'buffer_wbl2'):
                pass
            elif is_lds:
                for o in ops:
                    rd |= regs_of(o)
                rd.add('m0')
                self.kind = 'vmem_lds'
            elif '_load' in op:
                wr = regs_of(ops[0])
                for o in ops[1:]:
                    rd |= regs_of(o)
                if 'd16' in op:
                    rd |= wr
            elif '_store' in op:
                for o in ops:
                    rd |= regs_of(o)
                data = ops[0] if op.startswith('buffer_') else ops[1]
                if 'x3' in op or 'x4' in op:
                    self.store_data = regs_of(data)
            elif '_atomic' in op:
                ret = re.search(r'\bsc0\b', mods) is not None
                if ret and op.startswith('global_'):
                    wr = regs_of(ops[0])
                    for o in ops[1:]:
                        rd |= regs_of(o)
                else:
                    for o in ops:
                        rd |= regs_of(o)
                    if ret:
                        wr = regs_of(ops[0])
            else:
                raise ValueError(text)
        elif op.startswith('s_'):
            self.kind = 'salu'
            if op == 's_nop':
                self.ws = int(ops[0], 0) + 1
                self.kind = 'nop'
            elif op == 's_waitcnt':
                self.kind = 'wait'
            elif op.startswith(('s_load', 's_buffer_load', 's_memtime', 's_memrealtime')):
                self.kind = 'smem'
                wr = regs_of(ops[0])
                for o in ops[1:]:
                    rd |= regs_of(o)
            elif op.startswith(('s_cmp', 's_cbranch', 's_branch', 's_barrier', 's_endpgm', 's_setprio', 's_sleep', 's_bitcmp')):
                for o in ops:
                    rd |= regs_of(o)
            elif 'saveexec' in op:
                wr = regs_of(ops[0]) | {'exec'}
                rd = regs_of(ops[1]) | {'exec'}
            else:
                wr = regs_of(ops[0])
                for o in ops[1:]:
                    rd |= regs_of(o)
                if op.startswith(('s_addk', 's_mulk', 's_cmov')):
                    rd |= wr
        else:
            raise ValueError('unknown instruction: ' + text)
        self.wr, self.rd = wr, rd


def is_vec(r):
    return r[0] in 'va' and r != 'vcc'


class Kern:
    def __init__(self, name):
        self.name = name
        self.items = []
        self.blk = ()
        self.nblk = 0
        self.pend_vm = []
        self.pend_lg = []
        self.log = []
        self.nlabel = 0
        self.maxv = -1
        self.maxa = -1
        self.maxs = -1

    def _counts(self, i, p, c):
        b = i.blk
        return p.blk[:len(b)] == b or c[:len(b)] == b

    def _dist(self, idx, cur_blk):
        p = self.items[idx]
        d = 0
        for i in self.items[idx + 1:]:
            if isinstance(i, Ins) and self._counts(i, p, cur_blk):
                d += i.ws
        return d

    def _need_ws(self, c):
        need = 0
        n = len(self.items)
        d_all = 0
        for idx in range(n - 1, -1, -1):
            p = self.items[idx]
            if not isinstance(p, Ins):
                continue
            req = self._hazard(p, c)
            if req:
                d = self._dist(idx, c.blk)
                need = max(need, req - d)
            if c.blk[:len(p.blk)] == p.blk:
                d_all += p.ws
            if d_all > 24:
                break
        return need

    @staticmethod
    def _hazard(p, c):
        req = 0
        pv = p.kind in ('valu', 'trans')
        cv = c.kind in ('valu', 'trans')
        if pv:
            vw = {r for r in p.wr if is_vec(r)}
            sw = {r for r in p.wr if not is_vec(r)}
            if c.kind == 'mfma' and vw & c.rd:
                req = max(req, 2)
            if cv and c.op.startswith('v_permlane') and vw & c.rd:
                req = max(req, 2)
            if cv and c.dpp and vw & c.rd:
                req = max(req, 2)
            if cv and c.op.startswith(('v_readlane', 'v_readfirstlane')) and vw & c.rd:
                req = max(req, 1)
            if p.kind == 'trans' and c.kind in ('valu', 'mfma') and vw & c.rd:
                req = max(req, 1)
            if p.op.startswith('v_dot') and (vw & (c.rd | c.wr)) and c.kind in ('valu', 'trans', 'mfma', 'ds', 'vmem'):
                if not (c.op == p.op and not (vw & (c.rd - c.wr))):
                    req = max(req, 3)
            if sw:
                if cv and sw & c.rd:
                    req = max(req, 2)
                if cv and sw & c.lanesel:
                    req = max(req, 4)
                if c.kind in ('vmem', 'vmem_lds') and sw & c.rd:
                    req = max(req, 5)
                if c.kind in ('salu', 'smem') and sw & c.rd:
                    req = max(req, 2)
                if 'exec' in sw:
                    req = max(req, 5)
        if p.kind == 'mfma':
            far = {8: 12, 4: 8}[p.passes]
            if c.kind == 'mfma':
                if p.wr & c.srcAB:
                    req = max(req, far)
                if p.wr & c.srcC:
                    if not (p.wr == c.srcC and p.passes == c.passes):
                        req = max(req, {8: 10, 4: 6}[p.passes])
                if p.wr & c.wr and not (p.wr & c.srcC):
                    req = max(req, far)
            elif c.kind in ('valu', 'trans'):
                if p.wr & (c.rd | c.wr):
                    req = max(req, far)
                if p.srcC & c.wr:
                    req = max(req, {8: 7, 4: 3}[p.passes])
            elif c.kind in ('ds', 'vmem', 'vmem_lds'):
                if p.wr & (c.rd | c.wr):
                    req = max(req, far)
                if p.srcC & c.wr:
                    req = max(req, {8: 7, 4: 3}[p.passes])
        if p.kind == 'salu' and 'm0' in p.wr and c.kind == 'vmem_lds':
            req = max(req, 1)
        if p.store_data:
            if cv and p.store_data & c.wr:
                req = max(req, 2)
            elif p.store_data & c.wr:
                req = max(req, 1)
        return req

    def _younger_sure(self, lst, k, cur_blk):
        p = lst[k]
        n = 0
        for q in lst[k + 1:]:
            b = q.blk
            if p.blk[:len(b)] == b or cur_blk[:len(b)] == b:
                n += 1
        return n

    def _apply_wait(self, ins):
        t = ins.text
        m = re.search(r'vmcnt\((\d+)\)', t)
        if m:
            n = int(m.group(1))
            keep = []
            for k, p in enumerate(self.pend_vm):
                if self._younger_sure(self.pend_vm, k, ins.blk) >= n and self._wait_covers(ins, p):
                    continue
                keep.append(p)
            self.pend_vm = keep
        m = re.search(r'lgkmcnt\((\d+)\)', t)
        if m:
            n = int(m.group(1))
            has_smem = any(p.kind == 'smem' for p in self.pend_lg)
            keep = []
            for k, p in enumerate(self.pend_lg):
                ok = (n == 0) or (not has_smem and self._younger_sure(self.pend_lg, k, ins.blk) >= n)
                if ok and self._wait_covers(ins, p):
                    continue
                keep.append(p)
            self.pend_lg = keep

    def _wait_covers(self, w, p):
        if p.blk[:len(w.blk)] == w.blk:
            return True
        self._restore.setdefault(w.blk, []).append(p)
        return True

    _restore = None

    def raw(self, s):
        self.items.append(s)

    def c(self, s):
        self.items.append('    ; ' + s)

    def __call__(self, text, auto=False):
        if self._restore is None:
            self._restore = {}
        ins = Ins(text, self.blk)
        ins.auto = auto
        touched = ins.rd | ins.wr
        if ins.kind not in ('wait', 'nop'):
            nv = None
            for k, p in enumerate(self.pend_vm):
                if self._excluded(p, self.blk):
                    continue
                if p.wr & touched and not (ins.kind == 'vmem' and 'd16' in ins.op and 'd16' in p.op and not (p.wr & (ins.rd - ins.wr))):
                    n = self._younger_sure(self.pend_vm, k, self.blk)
                    nv = n if nv is None else min(nv, n)
            nl = None
            has_smem = any(p.kind == 'smem' for p in self.pend_lg)
            for k, p in enumerate(self.pend_lg):
                if p.wr & touched and not self._excluded(p, self.blk):
                    n = 0 if has_smem else self._younger_sure(self.pend_lg, k, self.blk)
                    nl = n if nl is None else min(nl, n)
            w = []
            if nv is not None:
                w.append('vmcnt(%d)' % min(nv, 63))
            if nl is not None:
                w.append('lgkmcnt(%d)' % min(nl, 15))
            if w:
                self('s_waitcnt ' + ' '.join(w), auto=True)
            need = self._need_ws(ins)
            while need > 0:
                k = min(need, 16)
                self.items.append(Ins('s_nop %d' % (k - 1), self.blk))
                need -= k
        self.items.append(ins)
        if ins.kind == 'wait':
            self._apply_wait(ins)
        elif ins.kind in ('vmem', 'vmem_lds'):
            self.pend_vm.append(ins)
        elif ins.kind in ('ds', 'smem'):
            self.pend_lg.append(ins)
        for r in touched:
            if r in ('vcc', 'exec', 'm0'):
                continue
            n = int(r[1:])
            if r[0] == 'v':
                self.maxv = max(self.maxv, n)
            elif r[0] == 'a':
                self.maxa = max(self.maxa, n)
            else:
                self.maxs = max(self.maxs, n)
        return ins

    def label(self, base):
        self.nlabel += 1
        return '%s_%s_%d' % (self.name, base, self.nlabel)

    def skip_begin(self, branch, tag=None):
        L = self.label('skip')
        self('%s %s' % (branch, L))
        self.nblk += 1
        self.blk = self.blk + (tag if tag else self.nblk,)
        return L

    excl = []

    def _excluded(self, p, blk):
        for e in self.excl:
            a = [t for t in p.blk if t in e]
            b = [t for t in blk if t in e]
            if a and b and a[0] != b[0]:
                return True
        return False

    def skip_end(self, L):
        b = self.blk
        self.blk = self.blk[:-1]
        self.raw(L + ':')
        back = self._restore.pop(b, []) if self._restore else []
        for p in reversed(back):
            lst = self.pend_vm if p.kind in ('vmem', 'vmem_lds') else self.pend_lg
            if p not in lst:
                lst.insert(0, p)

    def fork(self, branch):
        L = self.label('path')
        self('%s %s' % (branch, L))
        return (L, list(self.pend_vm), list(self.pend_lg), self.blk)

    def resume(self, f):
        L, vm, lg, blk = f
        self.raw(L + ':')
        self.pend_vm, self.pend_lg, self.blk = list(vm), list(lg), blk
        self.items.append(Ins('s_nop 15', blk))
        self.items[-1].text = None
        self.items[-1].ws = 0
        self.items[-1].kind = 'nop'
        self._barrier_here()

    def _barrier_here(self):
        self.items.append(Ins('s_nop 4', self.blk))

    def end(self):
        self('s_endpgm')
        self.pend_vm, self.pend_lg = [], []

    def wait(self, vm=None, lg=None):
        w = []
        if vm is not None:
            w.append('vmcnt(%d)' % vm)
        if lg is not None:
            w.append('lgkmcnt(%d)' % lg)
        self('s_waitcnt ' + ' '.join(w))

    def wait_for(self, ins):
        if ins in self.pend_vm:
            k = self.pend_vm.index(ins)
            self.wait(vm=min(63, self._younger_sure(self.pend_vm, k, self.blk)))

    def forget(self, ops):
        self.pend_vm = [p for p in self.pend_vm if p not in ops]

    def nvm(self):
        return len(self.pend_vm)

    def render(self):
        out = ['.p2align 8', '.globl %s' % self.name, '.type %s,@function' % self.name, self.name + ':']
        for i in self.items:
            if isinstance(i, Ins):
                if i.text is not None:
                    out.append('    ' + i.text)
            else:
                out.append(i)
        return '\n'.join(out)

    def descriptor(self):
        nv = self.maxv + 1
        acc = max(4, (nv + 3) // 4 * 4)
        tot = acc + (self.maxa + 1) if self.maxa >= 0 else nv
        return '\n'.join([
            '.p2align 6',
            '.amdhsa_kernel %s' % self.name,
            '  .amdhsa_next_free_vgpr %d' % max(tot, 1),
            '  .amdhsa_next_free_sgpr %d' % max(self.maxs + 1, 16),
            '  .amdhsa_accum_offset %d' % acc,
            '  .amdhsa_group_segment_fixed_size 0',
            '  .amdhsa_kernarg_size 104',
            '  .amdhsa_user_sgpr_count 2',
            '  .amdhsa_user_sgpr_kernarg_segment_ptr 1',
            '  .amdhsa_system_sgpr_workgroup_id_x 1',
            '.end_amdhsa_kernel'])


def vr(a, n=1, k='v'):
    return '%s%d' % (k, a) if n == 1 else '%s[%d:%d]' % (k, a, a + n - 1)


def ar(a, n=1):
    return vr(a, n, 'a')


def sr(a, n=1):
    return vr(a, n, 's')
```

```python
import sys
from asmlib import *

NAME = 'adaLN_cond__linear_kernel_hedgehog__glu_gated_bilinear__prompt'
PROF = '--prof' in sys.argv


def opt(name, default):
    for a in sys.argv:
        if a.startswith('--%s=' % name):
            return int(a.split('=')[1], 0)
    return default


FUSE = opt('fuse', 0)
NPRE = opt('npre', 8)
ROT = opt('rot', 1)
SPIN = 40000
SKIPST = ('karg', 'issued', 'stats', 'pre-go', 'mod', 'd first', 'x', 'q out')
CYC = opt('cyc', 0)

EPOCH = 0x0
P2, GA, GB = 0x1000, 0x2000, 0x2800
MODG = 0x4000
FA, FB = 0x8000, 0x10000
FX, FH = 0x18000, 0x1C000
KVB = 0x20000
STATS = 0x30000
KVP = 0x100000
X1 = 0x300000
WO, WGU, WD = 0x5E0000, 0x650000, 0x960000
PHIQ, HH = 0xB00000, 0xF00000
TS = 0x2000000
WS_BYTES = 0x10000000
LOG2E = 0x3fb8aa3b
OOB = 0x7f000000
MF = 'v_mfma_f32_32x32x16_bf16'
SC = ' sc1'

S_TAG, S_G, S_M, S_TILE, S_X = 28, 29, 30, 31, 32
K_X, K_WQKV, K_WPHI, K_WO, K_WG, K_WU, K_WD, K_C, K_WMOD, K_OUT = 48, 50, 52, 54, 58, 60, 62, 64, 66, 68
S_TS = 80


def srd(K, s, sptr, nbytes):
    K('s_mov_b32 s%d, s%d' % (s, sptr))
    K('s_and_b32 s%d, s%d, 0xffff' % (s + 1, sptr + 1))
    K('s_mov_b32 s%d, 0x%x' % (s + 2, nbytes))
    K('s_mov_b32 s%d, 0x20000' % (s + 3))


class Prof:
    def __init__(self, K, kid):
        self.K, self.kid, self.n = K, kid, 0
        self.names = []

    def stamp(self, name=''):
        if PROF and not (FUSE >= 2 and name in SKIPST):
            assert self.n < 16, 'too many stamps'
            K = self.K
            K('s_memtime s[98:99]' if CYC else 's_memrealtime s[98:99]')
            K.wait(lg=0)
            K('s_mov_b32 s%d, s98' % (S_TS + self.n))
            self.n += 1
            self.names.append(name)

    def flush(self, vtmp):
        if not PROF:
            return
        K = self.K
        self.stamp('end')
        K('s_lshl_b32 s96, s2, 2')
        K('s_add_u32 s96, s96, s3')
        K('s_lshl_b32 s96, s96, 6')
        K('s_add_u32 s96, s96, 0x%x' % (TS + self.kid * 0x10000))
        K('v_mov_b32 v%d, 0' % (vtmp + 1))
        for i in range(self.n):
            K('v_mov_b32 v%d, s%d' % (vtmp, S_TS + i))
            K('buffer_store_dword v%d, v%d, s[8:11], s96 offen offset:%d' % (vtmp, vtmp + 1, 4 * i))
            K('s_nop 1')
        print('   stamps k%d:' % self.kid, ' '.join(self.names))


def unpack(K, lo, hi, src):
    K('v_lshlrev_b32 v%d, 16, v%d' % (lo, src))
    K('v_and_b32 v%d, 0xffff0000, v%d' % (hi, src))


def weave(K, mfmas, fill):
    n = len(mfmas)
    done = 0
    for i, m in enumerate(mfmas):
        K(m)
        upto = (len(fill) * (i + 1) + n - 1) // n
        while done < upto:
            f = fill[done]
            if callable(f):
                f()
            else:
                K(f)
            done += 1


def head(K, pf):
    pf.stamp('start')
    K('s_cmp_ge_u32 s2, 256')
    f_end = K.fork('s_cbranch_scc1')
    K('s_load_dwordx2 s[4:5], s[0:1], 96')
    K('s_load_dwordx8 s[48:55], s[0:1], 0')
    K('s_load_dwordx8 s[56:63], s[0:1], 32')
    K('s_load_dwordx8 s[64:71], s[0:1], 64')
    K('v_lshrrev_b32 v1, 6, v0')
    K('v_readfirstlane_b32 s3, v1')
    K('v_and_b32 v1, 63, v0')
    K('v_lshlrev_b32 v1, 4, v1')
    K('v_and_b32 v2, 31, v0')
    K('v_bfe_u32 v3, v0, 5, 1')
    K('s_and_b32 s%d, s2, 7' % S_X)
    K('s_lshr_b32 s33, s2, 3')
    K('s_lshl_b32 s%d, s%d, 1' % (S_G, S_X))
    K('s_lshr_b32 s34, s33, 4')
    K('s_add_u32 s%d, s%d, s34' % (S_G, S_G))
    K('s_and_b32 s%d, s33, 15' % S_M)
    K('s_lshl_b32 s%d, s%d, 2' % (S_TILE, S_G))
    K('s_add_u32 s%d, s%d, s3' % (S_TILE, S_TILE))
    K.wait(lg=0)
    pf.stamp('karg')
    K('s_load_dword s6, s[4:5], 0x%x' % EPOCH)
    srd(K, 8, 4, WS_BYTES)
    srd(K, 12, K_X, 2048 * 896)
    return f_end


def make_tag(K):
    K.wait(lg=0)
    K('s_mul_i32 s%d, s6, 0x9e3779b1' % S_TAG)
    K('s_add_u32 s%d, s%d, 0x7f4a7c15' % (S_TAG, S_TAG))


def load_frags(K, dst, n, sbase, stmp, kind='v', flags=SC):
    out = []
    for i in range(n):
        if i % 4 == 0:
            if i == 0:
                cur = sbase
            else:
                K('s_add_u32 s%d, s%d, %d' % (stmp, sbase, 1024 * i))
                cur = stmp
        out.append(K('buffer_load_dwordx4 %s, v1, s[8:11], s%d offen offset:%d%s' % (vr(dst + 4 * i, 4, kind), cur, 1024 * (i % 4), flags)))
    return out


def dma_frags(K, n, smem, slds, stmp, flags=SC):
    out = []
    for i in range(n):
        if i % 4 == 0:
            K('s_add_u32 m0, s%d, %d' % (slds, 1024 * i))
            if i == 0:
                cur = smem
            else:
                K('s_add_u32 s%d, s%d, %d' % (stmp, smem, 1024 * i))
                cur = stmp
        out.append(K('buffer_load_dwordx4 v1, s[8:11], s%d offen offset:%d%s lds' % (cur, 1024 * (i % 4), flags)))
    return out


def poll(K, loads, tags, vacc):
    L = K.label('poll')
    Lx = K.label('pollx')
    K('s_mov_b32 s33, %d' % SPIN)
    K.raw(L + ':')
    for t in loads:
        K(t)
    K.wait(vm=0)
    K('v_xor_b32 v%d, s%d, v%d' % (vacc, S_TAG, tags[0]))
    for t in tags[1:]:
        K('v_bitop3_b32 v%d, v%d, v%d, s%d bitop3:0xf6' % (vacc, vacc, t, S_TAG))
    K('v_cmp_ne_u32 vcc, 0, v%d' % vacc)
    K('s_sub_u32 s33, s33, 1')
    K('s_cbranch_scc1 %s' % Lx)
    K('s_cbranch_vccnz %s' % L)
    K.raw(Lx + ':')


def flag_all(K, base, vtmp):
    K('v_lshlrev_b32 v%d, 8, v1' % vtmp)
    K('v_mov_b32 v%d, s%d' % (vtmp + 1, S_TAG))
    K('s_lshl_b32 s33, s2, 4')
    K('s_add_u32 s33, s33, 0x%x' % base)
    K('s_mov_b64 exec, 0xff')
    K('buffer_store_dword v%d, v%d, s[8:11], s33 offen%s' % (vtmp + 1, vtmp, SC))
    K('s_mov_b64 exec, -1')


def wait_all(K, base, vtmp):
    K('s_lshl_b32 s34, s%d, 12' % S_X)
    K('s_add_u32 s34, s34, 0x%x' % base)
    poll(K, ['buffer_load_dword v%d, v1, s[8:11], s34 offen offset:%d%s' % (vtmp + k, 1024 * k, SC) for k in range(4)],
         [vtmp + k for k in range(4)], vtmp + 4)


def softmax_pair(K, X, T, OUTP, OUTN, s_up):
    mx, mn, t0, t1, bp, bn = T, T + 1, T + 2, T + 3, T + 4, T + 5
    E = T + 8
    for (d, op3, op2) in ((mx, 'v_max3_f32', 'v_max_f32'), (mn, 'v_min3_f32', 'v_min_f32')):
        t = t0 if d == mx else t1
        K('%s v%d, v%d, v%d, v%d' % (op3, d, X, X + 1, X + 2))
        K('%s v%d, v%d, v%d, v%d' % (op3, t, X + 12, X + 13, X + 14))
        for i in range(3, 11, 2):
            K('%s v%d, v%d, v%d, v%d' % (op3, d, d, X + i, X + i + 1))
        K('%s v%d, v%d, v%d' % (op2, t, t, X + 15))
        K('%s v%d, v%d, v%d' % (op2, d, d, X + 11))
        K('v_cndmask_b32 v%d, v%d, v%d, s[%d:%d]' % (t, t, d, s_up, s_up + 1))
        K('%s v%d, v%d, v%d' % (op2, d, d, t))
    K('v_mov_b32 v%d, v%d' % (t0, mx))
    K('v_mov_b32 v%d, v%d' % (t1, mn))
    K('v_permlane32_swap_b32 v%d, v%d' % (mx, t0))
    K('v_permlane32_swap_b32 v%d, v%d' % (mn, t1))
    K('v_max_f32 v%d, v%d, v%d' % (mx, mx, t0))
    K('v_min_f32 v%d, v%d, v%d' % (mn, mn, t1))
    K('v_mul_f32 v%d, 0x%x, v%d' % (mx, LOG2E | 0x80000000, mx))
    K('v_mul_f32 v%d, 0x%x, v%d' % (mn, LOG2E, mn))
    K('v_mov_b32 v%d, 0xff800000' % t0)
    K('v_cndmask_b32 v%d, v%d, v%d, s[%d:%d]' % (bp, mx, t0, s_up, s_up + 1))
    K('v_cndmask_b32 v%d, v%d, v%d, s[%d:%d]' % (bn, mn, t0, s_up, s_up + 1))
    for i in range(16):
        K('v_fma_f32 v%d, v%d, s40, v%d' % (E + i, X + i, bp if i >= 12 else mx))
        K('v_fma_f32 v%d, -v%d, s40, v%d' % (E + 16 + i, X + i, bn if i >= 12 else mn))
    for i in range(32):
        K('v_exp_f32 v%d, v%d' % (E + i, E + i))
    sp, sn = T, T + 2
    for (s, b) in ((sp, E), (sn, E + 16)):
        K('v_pk_add_f32 v[%d:%d], v[%d:%d], v[%d:%d]' % (s, s + 1, b, b + 1, b + 2, b + 3))
    for i in range(4, 16, 2):
        for (s, b) in ((sp, E), (sn, E + 16)):
            K('v_pk_add_f32 v[%d:%d], v[%d:%d], v[%d:%d]' % (s, s + 1, s, s + 1, b + i, b + i + 1))
    for s in (sp, sn):
        K('v_add_f32 v%d, v%d, v%d' % (s, s, s + 1))
    for s in (sp, sn):
        K('v_mov_b32 v%d, v%d' % (s + 1, s))
    for s in (sp, sn):
        K('v_permlane32_swap_b32 v%d, v%d' % (s, s + 1))
    for s in (sp, sn):
        K('v_add_f32 v%d, v%d, v%d' % (s, s, s + 1))
    for s in (sp, sn):
        K('v_rcp_f32 v%d, v%d' % (s, s))
    for s in (sp, sn):
        K('v_mov_b32 v%d, v%d' % (s + 1, s))
    for i in range(8):
        for (s, b, o) in ((sp, E, OUTP), (sn, E + 16, OUTN)):
            K('v_pk_mul_f32 v[%d:%d], v[%d:%d], v[%d:%d]' % (b + 2 * i, b + 2 * i + 1, b + 2 * i, b + 2 * i + 1, s, s + 1))
        for (s, b, o) in ((sp, E, OUTP), (sn, E + 16, OUTN)):
            K('v_cvt_pk_bf16_f32 v%d, v%d, v%d' % (o + i, b + 2 * i, b + 2 * i + 1))


def cvt16(K, dst, src):
    for i in range(8):
        K('v_cvt_pk_bf16_f32 v%d, v%d, v%d' % (dst + i, src + 2 * i, src + 2 * i + 1))


def rowstats(K, S, Q, t0, t1, RS, NM):
    K('v_mov_b32 v%d, v%d' % (t0, S))
    K('v_mov_b32 v%d, v%d' % (t1, Q))
    K('v_permlane32_swap_b32 v%d, v%d' % (S, t0))
    K('v_permlane32_swap_b32 v%d, v%d' % (Q, t1))
    K('v_add_f32 v%d, v%d, v%d' % (S, S, t0))
    K('v_add_f32 v%d, v%d, v%d' % (Q, Q, t1))
    K('v_mul_f32 v%d, 0x3b124925, v%d' % (NM, S))
    K('v_mov_b32 v%d, 0x3727c5ac' % t0)
    K('v_mov_b32 v%d, v%d' % (RS, t0))
    K('v_fmac_f32 v%d, 0x3b124925, v%d' % (RS, Q))
    K('v_fma_f32 v%d, -v%d, v%d, v%d' % (RS, NM, NM, RS))
    K('v_max_f32 v%d, v%d, v%d' % (RS, RS, t0))
    K('v_rsq_f32 v%d, v%d' % (RS, RS))
    K('v_mul_f32 v%d, -1.0, v%d' % (NM, NM))
    K('v_mul_f32 v%d, v%d, v%d' % (NM, NM, RS))


DORD = [(j & 3) + 8 * (j >> 2) for j in range(8)]


def phase_a(K, pf, last):
    LX, LWH, LSCR = 0, 114688, 151552
    LP1 = LSCR
    LP1E = LSCR + 8192
    LWT, LKV = 0, 49152
    NH = 12
    XF, AK, AV, PB, T, PR = 16, 128, 144, 160, 176, 184
    RS, NM = 8, 10
    A_AB, A_WP, A_ID, A_WT, A_WPR = 0, 16, 24, 32, 96
    srd(K, 16, K_WQKV, 448 * 2688)
    for r in (PR + 32, PR + 33, PR + 34, PR + 35, PR + 68, PR + 69, PR + 70, PR + 71):
        K('v_mov_b32 v%d, 0x%x' % (r, OOB))

    def mod_loads(MW, MC):
        srd(K, 20, K_WMOD, 448 * 5376)
        srd(K, 24, K_C, 896)
        K('v_lshrrev_b32 v5, 3, v0')
        K('v_and_b32 v6, 7, v0')
        K('v_mul_u32_u24 v4, 5376, v5')
        K('v_lshl_add_u32 v4, v6, 4, v4')
        K('v_lshlrev_b32 v5, 1, v5')
        K('s_lshl_b32 s34, s2, 7')
        for i in range(14):
            K('buffer_load_ushort v%d, v5, s[24:27], 0 offen offset:%d' % (MC + i, 64 * i))
        for i in range(14):
            K('buffer_load_dwordx4 v[%d:%d], v4, s[20:23], s34 offen' % (MW + 4 * i, MW + 4 * i + 3))
            if i < 13:
                K('s_add_u32 s34, s34, %d' % (32 * 5376))

    def mod_compute(MW, MC, MA, TMP, scr, secs):
        for i in range(14):
            K('v_lshlrev_b32 v%d, 16, v%d' % (MC + i, MC + i))
            K('v_mul_f32 v%d, 0x%x, v%d' % (TMP + i, LOG2E | 0x80000000, MC + i))
        for i in range(14):
            K('v_exp_f32 v%d, v%d' % (TMP + i, TMP + i))
        for i in range(14):
            K('v_add_f32 v%d, 1.0, v%d' % (TMP + i, TMP + i))
        for i in range(14):
            K('v_rcp_f32 v%d, v%d' % (TMP + i, TMP + i))
        for i in range(14):
            K('v_mul_f32 v%d, v%d, v%d' % (TMP + i, TMP + i, MC + i))
        for i in range(0, 14, 2):
            K('v_cvt_pk_bf16_f32 v%d, v%d, v%d' % (TMP + i, TMP + i, TMP + i + 1))
            unpack(K, MC + i, MC + i + 1, TMP + i)
        for i in range(14):
            for d in range(4):
                t = TMP + 2 * d
                unpack(K, t, t + 1, MW + 4 * i + d)
                if i == 0:
                    K('v_pk_mul_f32 v[%d:%d], v[%d:%d], v[%d:%d] op_sel_hi:[1,0]' % (MA + 2 * d, MA + 2 * d + 1, t, t + 1, MC, MC + 1))
                elif i % 2 == 0:
                    K('v_pk_fma_f32 v[%d:%d], v[%d:%d], v[%d:%d], v[%d:%d] op_sel_hi:[1,0,1]' % (MA + 2 * d, MA + 2 * d + 1, t, t + 1, MC + i, MC + i + 1, MA + 2 * d, MA + 2 * d + 1))
                else:
                    K('v_pk_fma_f32 v[%d:%d], v[%d:%d], v[%d:%d], v[%d:%d] op_sel:[0,1,0] op_sel_hi:[1,1,1]' % (MA + 2 * d, MA + 2 * d + 1, t, t + 1, MC + i - 1, MC + i, MA + 2 * d, MA + 2 * d + 1))
        K('v_lshlrev_b32 v4, 5, v0')
        K('v_add_u32 v4, %d, v4' % scr)
        K('ds_write_b128 v4, v[%d:%d]' % (MA, MA + 3))
        K('ds_write_b128 v4, v[%d:%d] offset:16' % (MA + 4, MA + 7))
        K.wait(lg=0)
        K('s_barrier')
        K('s_cmp_eq_u32 s3, 3')
        L2 = K.skip_begin('s_cbranch_scc0', 'w3')
        K('v_lshrrev_b32 v4, 2, v1')
        K('v_add_u32 v4, %d, v4' % scr)
        Z = TMP
        for r in range(32):
            K('ds_read_b32 v%d, v4 offset:%d' % (Z + r, 256 * r))
        I = TMP + 32
        K('s_mul_i32 s35, s2, 9363')
        K('s_lshr_b32 s35, s35, 16')
        K('s_mul_i32 s34, s35, 7')
        K('s_sub_u32 s34, s2, s34')
        K('s_lshl_b32 s34, s34, 6')
        K('v_lshrrev_b32 v%d, 4, v1' % I)
        K('v_add_u32 v%d, s34, v%d' % (I, I))
        if 0 in secs:
            K('v_lshrrev_b32 v%d, 3, v%d' % (I + 1, I))
            K('v_and_b32 v%d, 7, v%d' % (I + 2, I))
            K('v_lshl_add_u32 v%d, v%d, 4, v%d' % (I + 1, I + 1, I + 2))
            K('v_lshlrev_b32 v%d, 3, v%d' % (I + 1, I + 1))
        else:
            K('v_bfe_u32 v%d, v%d, 2, 1' % (I + 3, I))
            K('v_and_b32 v%d, 3, v%d' % (I + 4, I))
            K('v_lshl_add_u32 v%d, v%d, 4, v%d' % (I + 4, I + 3, I + 4))
            K('v_lshrrev_b32 v%d, 4, v%d' % (I + 2, I))
            K('v_lshl_add_u32 v%d, v%d, 5, v%d' % (I + 2, I + 2, I + 4))
            K('v_bfe_u32 v%d, v%d, 3, 1' % (I + 5, I))
            K('v_lshl_add_u32 v%d, v%d, 2, v%d' % (I + 2, I + 5, I + 2))
            K('v_lshlrev_b32 v%d, 2, v%d' % (I + 2, I + 2))
            K('v_lshrrev_b32 v%d, 5, v%d' % (I + 3, I))
            K('v_lshl_add_u32 v%d, v%d, 5, v%d' % (I + 3, I + 3, I + 4))
            K('v_bfe_u32 v%d, v%d, 3, 2' % (I + 5, I))
            K('v_lshl_add_u32 v%d, v%d, 2, v%d' % (I + 3, I + 5, I + 3))
            K('v_lshlrev_b32 v%d, 2, v%d' % (I + 3, I + 3))
        for st in (16, 8, 4, 2):
            for r in range(0, st, 2):
                K('v_pk_add_f32 v[%d:%d], v[%d:%d], v[%d:%d]' % (Z + r, Z + r + 1, Z + r, Z + r + 1, Z + r + st, Z + r + st + 1))
        K('v_add_f32 v%d, v%d, v%d' % (Z, Z, Z + 1))
        K('v_cvt_pk_bf16_f32 v%d, v%d, v%d' % (Z, Z, Z))
        K('v_and_b32 v%d, 0xffff0000, v%d' % (Z, Z))
        K('v_add_f32 v%d, 1.0, v%d' % (Z + 2, Z))
        K('v_cvt_pk_bf16_f32 v%d, v%d, v%d' % (Z + 2, Z + 2, Z + 2))
        K('v_and_b32 v%d, 0xffff0000, v%d' % (Z + 2, Z + 2))
        K('v_mov_b32 v%d, s%d' % (Z + 1, S_TAG))
        K('v_mov_b32 v%d, s%d' % (Z + 3, S_TAG))
        tab = [(I + 1, Z, MODG + 64, 1), (I + 1, Z + 2, MODG, 1), (I + 3, Z, GA, 0), (I + 2, Z, P2 + 32, 0), (I + 2, Z + 2, P2, 0), (I + 3, Z, GB, 0)]
        for sec in secs:
            idx, val, base, wide = tab[sec]
            K('s_cmp_eq_u32 s35, %d' % sec)
            L3 = K.skip_begin('s_cbranch_scc0')
            K('s_mov_b32 s34, 0x%x' % base)
            if wide:
                K('buffer_store_dwordx2 v[%d:%d], v%d, s[8:11], s34 offen%s' % (val, val + 1, idx, SC))
            else:
                K('buffer_store_dword v%d, v%d, s[8:11], s34 offen%s' % (val, idx, SC))
            K.skip_end(L3)
        K.skip_end(L2)

    K('s_cmp_lt_u32 s2, 14')
    L = K.skip_begin('s_cbranch_scc0', 'p1')
    mod_loads(16, 72)
    make_tag(K)
    mod_compute(16, 72, 88, 96, LX, (0, 1))
    K('s_barrier')
    K.skip_end(L)
    pf.stamp('mod')
    K('s_and_b32 s33, s%d, 1' % S_G)
    K('s_mul_i32 s33, s33, 3')
    K('s_add_u32 s33, s33, s%d' % S_M)
    K('s_mul_i32 s34, s33, 9363')
    K('s_lshr_b32 s34, s34, 16')
    K('s_mul_i32 s34, s34, 7')
    K('s_sub_u32 s39, s33, s34')
    if not ROT:
        K('s_mov_b32 s39, 0')
    K('v_lshrrev_b32 v4, 7, v1')
    K('v_mul_u32_u24 v4, 896, v4')
    K('v_lshrrev_b32 v5, 8, v1')
    K('v_and_b32 v6, 7, v0')
    K('v_xor_b32 v6, v5, v6')
    K('v_lshl_add_u32 v5, v6, 4, v4')
    K('v_xor_b32 v6, 4, v6')
    K('v_lshl_add_u32 v6, v6, 4, v4')
    K('s_mul_i32 s34, s%d, 28672' % S_TILE)
    K('s_mul_i32 s35, s3, 28672')
    K('s_lshl_b32 s33, s39, 7')
    xd = []
    for cb in range(7):
        if cb:
            K('s_add_u32 s33, s33, 128')
            K('s_cmp_eq_u32 s33, 896')
            K('s_cmov_b32 s33, 0')
        K('s_add_u32 s37, s34, s33')
        for rb in range(4):
            K('s_add_u32 m0, s35, %d' % ((rb * 7 + cb) * 1024))
            K('s_add_u32 s36, s37, %d' % (rb * 7168))
            xd.append(K('buffer_load_dwordx4 v%d, s[12:15], s36 offen lds' % (5 + (rb & 1))))
    K('v_lshrrev_b32 v4, 6, v1')
    K('v_mul_u32_u24 v4, 2688, v4')
    K('v_and_b32 v7, 0x30, v1')
    K('v_add_u32 v7, v4, v7')
    K('s_mul_i32 s37, s%d, 56' % S_M)
    K('s_and_b32 s38, s37, 8')
    K('s_and_b32 s37, s37, 0xfff0')
    QB4 = 4 * 43008

    def w_src(idx):
        return (idx // 3) * 43008 + (idx % 3) * 896

    def unit_base(dst, add):
        K('s_add_u32 s%d, s33, s39' % dst)
        if add:
            K('s_add_u32 s%d, s%d, %d' % (dst, dst, add))
        K('s_cmp_ge_u32 s%d, 7' % dst)
        K('s_cselect_b32 s36, 7, 0')
        K('s_sub_u32 s%d, s%d, s36' % (dst, dst))
        K('s_mul_i32 s%d, s%d, %d' % (dst, dst, QB4))
        K('s_add_u32 s%d, s%d, s37' % (dst, dst))
    wt_ops = []
    K('s_cmp_lt_u32 s3, 3')
    L = K.skip_begin('s_cbranch_scc0', 'w012')
    K('s_mov_b32 s33, s3')
    unit_base(35, 0)
    K('s_mul_i32 s34, s3, 12288')
    wh = []
    for i in range(12):
        K('s_add_u32 m0, s34, %d' % (LWH + 1024 * i))
        K('s_add_u32 s36, s35, %d' % w_src(i))
        wh.append(K('buffer_load_dwordx4 v7, s[16:19], s36 offen lds'))
    unit_base(35, 3)
    for i in range(12):
        K('s_add_u32 s36, s35, %d' % w_src(i))
        wt_ops.append(K('buffer_load_dwordx4 %s, v7, s[16:19], s36 offen' % ar(A_WT + 4 * i, 4)))
    K('s_mov_b32 s33, 6')
    unit_base(35, 0)
    K('s_mul_i32 s34, s3, 896')
    K('s_add_u32 s35, s35, s34')
    for i in range(4):
        K('s_add_u32 s36, s35, %d' % (i * 43008))
        wt_ops.append(K('buffer_load_dwordx4 %s, v7, s[16:19], s36 offen' % ar(A_WT + 48 + 4 * i, 4)))

    def issue_wp():
        srd(K, 20, K_WPHI, 16 * 1568)
        K('s_mul_i32 s35, s%d, 1568' % S_M)
        K('v_mul_u32_u24 v4, %d, v3' % (4 * 56))
        K('v_lshl_add_u32 v4, v2, 1, v4')
        K('v_mov_b32 v6, 0x%x' % OOB)
        K('v_cmp_gt_u32 vcc, 28, v2')
        K('v_cndmask_b32 v4, v6, v4, vcc')
        K('v_cmp_eq_u32 vcc, 0, v3')
        K('v_cndmask_b32 v5, v6, v4, vcc')
        for a in range(2):
            for j in range(8):
                K('buffer_load_ushort a%d, v%d, s[20:23], s35 offen offset:%d' % (A_WPR + 8 * a + j, 5 if (a == 1 and j >= 4) else 4, (16 * a + DORD[j]) * 56))
    K.skip_end(L)
    make_tag(K)
    pf.stamp('issued')

    def issue_prep(r):
        R = PR + 36 * r
        V = PB
        K('s_sub_u32 s33, s2, 28')
        K('s_cmp_lt_u32 s2, 14')
        K('s_cmov_b32 s33, s2')
        K('s_mul_i32 s33, s33, 3')
        K('s_add_u32 s33, s33, s3')
        if r:
            K('s_add_u32 s33, s33, 684')
        K('s_cmp_ge_u32 s33, 392')
        K('s_cselect_b32 s72, s%d, s%d' % (K_WU, K_WG))
        K('s_cselect_b32 s73, s%d, s%d' % (K_WU + 1, K_WG + 1))
        K('s_cselect_b32 s41, 256, 0')
        K('s_cselect_b32 s34, 392, 0')
        K('s_sub_u32 s34, s33, s34')
        K('s_mul_i32 s35, s34, 4682')
        K('s_lshr_b32 s35, s35, 16')
        K('s_mul_i32 s36, s35, 14')
        K('s_sub_u32 s36, s34, s36')
        K('s_mul_i32 s74, s35, %d' % (16 * 3584))
        K('s_lshl_b32 s97, s36, 8')
        K('s_add_u32 s74, s74, s97')
        K('s_add_u32 s75, s74, 64')
        K('s_add_u32 s76, s74, 128')
        K('s_add_u32 s77, s74, 192')
        K('s_movk_i32 s42, 3584')
        K('s_mov_b32 s43, 0x%x' % (448 * 3584))
        K('s_mul_i32 s%d, s35, 7168' % (44 + r))
        K('s_add_u32 s%d, s%d, 0x%x' % (44 + r, 44 + r, WGU))
        K('v_lshrrev_b32 v4, 4, v2')
        K('s_lshl_b32 s97, s36, 3')
        K('v_add_u32 v4, s97, v4')
        K('v_and_b32 v5, 0xf0, v1')
        K('v_lshl_add_u32 v5, v3, 9, v5')
        K('v_add_u32 v5, s41, v5')
        for b in range(4):
            K('v_add_u32 v6, %d, v4' % (2 * b))
            K('v_mul_u32_u24 v%d, 9363, v6' % V)
            K('v_lshrrev_b32 v%d, 16, v%d' % (V, V))
            K('v_mul_u32_u24 v%d, 189, v%d' % (V, V))
            K('v_add_u32 v%d, v%d, v6' % (V, V))
            K('v_lshl_add_u32 v%d, v%d, 10, v5' % (R + 32 + b, V))
        K('s_mov_b64 s[78:79], 0')
        if r:
            K('s_cmp_ge_u32 s33, 784')
            L1 = K.skip_begin('s_cbranch_scc0')
            K('s_cmp_ge_u32 s33, 1176')
            K('s_cselect_b32 s72, s%d, s%d' % (K_WO, K_WD))
            K('s_cselect_b32 s73, s%d, s%d' % (K_WO + 1, K_WD + 1))
            for (rg, a, b) in ((43, 448 * 896, 1792 * 896), (34, 1176, 784), (41, 28 * 896, 32 * 896), (97, 0x10000, 112 * 2048),
                               (46, WO, WD), (40, 0x8000, 2048)):
                K('s_mov_b32 s%d, 0x%x' % (rg, b))
                K('s_cmov_b32 s%d, 0x%x' % (rg, a))
            K('s_cselect_b32 s75, %d, 64' % (16 * 896))
            K('s_cselect_b32 s76, 64, %d' % (16 * 896))
            K('s_cselect_b32 s47, 11, 12')
            K('s_cselect_b32 s79, -1, 0')
            K('s_sub_u32 s34, s33, s34')
            K('s_mul_i32 s35, s34, 9363')
            K('s_lshr_b32 s35, s35, 16')
            K('s_mul_i32 s36, s35, 7')
            K('s_sub_u32 s36, s34, s36')
            K('s_mul_i32 s74, s35, s41')
            K('s_lshl_b32 s41, s36, 7')
            K('s_add_u32 s74, s74, s41')
            K('s_add_u32 s75, s75, s74')
            K('s_add_u32 s76, s76, s74')
            K('s_add_u32 s77, s74, %d' % (16 * 896 + 64))
            K('s_movk_i32 s42, 896')
            K('s_mul_i32 s97, s97, s36')
            K('s_lshl_b32 s35, s35, s47')
            K('s_add_u32 s97, s97, s35')
            K('s_add_u32 s%d, s97, s46' % (44 + r))
            K('v_mov_b32 v%d, v1' % (R + 32))
            K('v_add_u32 v%d, 1024, v1' % (R + 33))
            K('v_add_u32 v%d, s40, v1' % (R + 34))
            K('v_add_u32 v%d, s40, v%d' % (R + 35, R + 33))
            K('s_cmp_ge_u32 s33, 1288')
            K('s_cselect_b32 s43, 0, s43')
            K('s_cselect_b32 s%d, 0x%x, s%d' % (44 + r, 0x3000000, 44 + r))
            K.skip_end(L1)
        srd_dyn = 20
        K('s_mov_b32 s20, s72')
        K('s_and_b32 s21, s73, 0xffff')
        K('s_mov_b32 s22, s43')
        K('s_mov_b32 s23, 0x20000')
        K('v_lshlrev_b32 v4, 2, v3')
        K('v_mov_b32 v6, 0x%x' % OOB)
        for j in range(8):
            K('v_add_u32 v5, %d, v4' % DORD[j])
            K('v_mul_lo_u32 v5, v5, s42')
            K('v_lshl_add_u32 v%d, v2, 1, v5' % (V + j))
        for j in range(4):
            K('v_cndmask_b32 v%d, v%d, v6, s[78:79]' % (V + 8 + j, V + 4 + j))
        for i in range(4):
            for j in range(8):
                va = V + 8 + (j - 4) if (i & 1 and j >= 4) else V + j
                K('buffer_load_ushort v%d, v%d, s[20:23], s%d offen' % (R + 8 * i + j, va, 74 + i))

    def finish_prep(r):
        R = PR + 36 * r
        for i in range(4):
            for d in range(4):
                K('v_lshl_or_b32 v%d, v%d, 16, v%d' % (R + 8 * i + d, R + 8 * i + 2 * d + 1, R + 8 * i + 2 * d))
            K('buffer_store_dwordx4 %s, v%d, s[8:11], s%d offen%s' % (vr(R + 8 * i, 4), R + 32 + i, 44 + r, SC))

    K('s_mov_b32 s41, 0x3f803f80')
    K('v_lshlrev_b32 v5, 2, v3')
    K('v_sub_u32 v5, v2, v5')
    K('v_mov_b32 v9, 0x3f80')
    for i in range(8):
        c = 16 * (i >> 2) + 8 * ((i >> 1) & 1) + 2 * (i & 1)
        K('v_subrev_u32 v6, %d, v5' % c)
        K('v_cmp_gt_u32 vcc, 2, v6')
        K('v_lshlrev_b32 v6, 4, v6')
        K('v_lshlrev_b32 v6, v6, v9')
        K('v_cndmask_b32 v6, 0, v6, vcc')
        K('v_accvgpr_write_b32 a%d, v6' % (A_ID + i))
    K('v_lshrrev_b32 v4, 3, v2')
    K('v_mul_u32_u24 v4, 7168, v4')
    K('v_and_b32 v5, 7, v2')
    K('v_lshl_add_u32 v4, v5, 7, v4')
    K('s_mul_i32 s35, s3, 28672')
    K('v_add_u32 v4, s35, v4')
    K('v_bfe_u32 v5, v2, 1, 3')
    K('v_xor_b32 v5, v3, v5')
    for a in range(4):
        K('v_xor_b32 v6, %d, v5' % (2 * a))
        K('v_lshl_add_u32 v%d, v6, 4, v4' % (12 + a))
    K('s_cmp_lt_u32 s3, 3')
    L = K.skip_begin('s_cbranch_scc0', 'w012')
    K.wait(vm=28)
    K.skip_end(L)
    K('s_cmp_eq_u32 s3, 3')
    L = K.skip_begin('s_cbranch_scc0', 'w3')
    K.wait(vm=0)
    K.skip_end(L)
    K.forget(xd)
    pf.stamp('x')
    for t in range(28):
        K('ds_read_b128 %s, v%d offset:%d' % (vr(XF + 4 * t, 4), 12 + (t & 3), (t >> 2) * 1024))
    for i in range(4):
        K('v_mov_b32 v%d, 0' % (T + i))
    for d in range(112):
        K('v_dot2c_f32_bf16 v%d, s41, v%d' % (T + (d & 1), XF + d))
        K('v_dot2c_f32_bf16 v%d, v%d, v%d' % (T + 2 + (d & 1), XF + d, XF + d))
    K('v_add_f32 v%d, v%d, v%d' % (T, T, T + 1))
    K('v_add_f32 v%d, v%d, v%d' % (T + 2, T + 2, T + 3))
    rowstats(K, T, T + 2, T + 4, T + 5, RS, NM)
    K('v_mov_b32 v%d, v%d' % (RS + 1, RS))
    K('v_mov_b32 v%d, v%d' % (NM + 1, NM))
    K('v_bfe_u32 v4, v0, 2, 2')
    K('v_lshl_add_u32 v4, v3, 3, v4')
    K('v_lshlrev_b32 v4, 6, v4')
    K('v_bfe_u32 v5, v0, 4, 1')
    K('v_lshl_add_u32 v4, v5, 5, v4')
    K('v_and_b32 v5, 3, v0')
    K('v_lshl_add_u32 v4, v5, 3, v4')
    K('v_add_u32 v13, s38, v4')
    K('v_add_u32 v12, %d, v13' % LWH)
    K('s_lshl_b32 s35, s39, 9')
    K('s_add_u32 s35, s35, %d' % LP1)
    K('v_lshl_add_u32 v14, v3, 6, s35')
    K('s_mul_i32 s35, s3, 12288')
    K('v_add_u32 v15, s35, v1')
    K('s_lshl_b32 s35, s3, 10')
    K('v_add_u32 v7, s35, v1')
    pf.stamp('stats')

    def prenorm(t):
        for i in range(4):
            unpack(K, T + 2 * i, T + 2 * i + 1, XF + 4 * t + i)
        for i in range(4):
            K('v_pk_fma_f32 v[%d:%d], v[%d:%d], v[%d:%d], v[%d:%d]' % (T + 2 * i, T + 2 * i + 1, T + 2 * i, T + 2 * i + 1, RS, RS + 1, NM, NM + 1))
        for i in range(4):
            K('v_cvt_pk_bf16_f32 v%d, v%d, v%d' % (XF + 4 * t + i, T + 2 * i, T + 2 * i + 1))
    for t in range(NPRE):
        prenorm(t)
    K('s_cmp_eq_u32 s3, 3')
    L = K.skip_begin('s_cbranch_scc0', 'w3')
    G = PR
    K('s_mov_b32 s34, 0x%x' % MODG)
    K('s_mov_b32 s35, 0x%x' % (MODG + 4096))
    poll(K, ['buffer_load_dwordx4 %s, v1, s[8:11], s%d offen offset:%d%s' % (vr(G + 4 * i, 4), 34 + i // 4, 1024 * (i % 4), SC) for i in range(7)],
         [G + 2 * i + 1 for i in range(14)], 4)
    K('v_lshrrev_b32 v4, 1, v1')
    K('v_add_u32 v4, %d, v4' % LP1)
    for i in range(7):
        K('v_mov_b32 v%d, v%d' % (G + 4 * i + 1, G + 4 * i + 2))
        K('ds_write_b64 v4, %s offset:%d' % (vr(G + 4 * i, 2), 512 * i))
        K('ds_write_b64 v4, %s offset:%d' % (vr(G + 4 * i, 2), 3584 + 512 * i))
    K.skip_end(L)
    K('s_cmp_lt_u32 s3, 3')
    L = K.skip_begin('s_cbranch_scc0', 'w012')
    K.wait(vm=16)
    K.skip_end(L)
    K.forget(wh)
    pf.stamp('pre-go')
    issue_wp()
    K('s_sub_u32 s33, s2, 14')
    K('s_cmp_lt_u32 s33, 28')
    K('s_cselect_b32 s7, 2, 1')
    K('s_cmp_eq_u32 s3, 3')
    K('s_cselect_b32 s33, 1, 0')
    K('s_andn2_b32 s7, s7, s33')
    K('s_cmp_eq_u32 s7, 2')
    L = K.skip_begin('s_cbranch_scc0', 'lmod')
    K.wait(lg=0)
    mod_loads(PR, PR + 56)
    K.skip_end(L)
    K('s_cmp_eq_u32 s7, 1')
    L = K.skip_begin('s_cbranch_scc0', 'prep')
    issue_prep(0)
    issue_prep(1)
    K.skip_end(L)
    K('s_mov_b32 s40, 0x%x' % LOG2E)
    K('s_mov_b32 s41, 0x3f803f80')
    K('v_cmp_eq_u32 s[42:43], 1, v3')
    K('v_cmp_eq_u32 s[46:47], 28, v2')
    K('v_cmp_lt_u32 s[72:73], 28, v2')
    K.wait(lg=0)
    K('s_barrier')
    pf.stamp('go')

    def rd_a(t, parts, base):
        o = []
        for n, p in enumerate(parts):
            b = base + 4 * n
            reg, off = (12, (3 * t + p) * 1024) if t < NH else (13, LWT + (3 * (t - NH) + p) * 1024)
            o.append('ds_read_b64_tr_b16 %s, v%d offset:%d' % (ar(b, 2), reg, off))
            o.append('ds_read_b64_tr_b16 %s, v%d offset:%d' % (ar(b + 2, 2), reg, off + 256))
        return o

    def rd_p(t):
        return ['ds_read_b128 v[%d:%d], v14 offset:%d' % (PB + 4 * i, PB + 4 * i + 3, 128 * t + 16 * i) for i in range(4)]

    def mk_h(t):
        o = []
        for i in range(4):
            x = XF + 4 * t + i
            o += ['v_lshlrev_b32 v%d, 16, v%d' % (T + 2 * i, x), 'v_and_b32 v%d, 0xffff0000, v%d' % (T + 2 * i + 1, x)]
        if t >= NPRE:
            o += ['v_fma_f32 v%d, v%d, v%d, v%d' % (T + i, T + i, RS, NM) for i in range(8)]
        o += ['W']
        o += ['v_fmac_f32 v%d, v%d, v%d' % (PB + 8 + i, T + i, PB + i) for i in range(8)]
        o += ['v_cvt_pk_bf16_f32 v%d, v%d, v%d' % (XF + 4 * t + i, PB + 8 + 2 * i, PB + 9 + 2 * i) for i in range(4)]
        return o
    for s in rd_p(0) + rd_a(0, (1, 2), A_AB) + mk_h(0) + rd_p(1):
        if s != 'W':
            K(s)
    for t in range(28):
        if t == 2:
            K('s_cmp_eq_u32 s7, 2')
            L = K.skip_begin('s_cbranch_scc0', 'lmod')
            K.wait(vm=44)
            K.skip_end(L)
            K.forget(wt_ops)
        if t == NH - 2:
            K.wait(lg=0)
            K('s_barrier')
        b = A_AB + 8 * (t & 1)
        h = vr(XF + 4 * t, 4)
        mf = ['%s %s, %s, %s, %s' % (MF, vr(AK, 16), ar(b, 4), h, '0' if t == 0 else vr(AK, 16)),
              '%s %s, %s, %s, %s' % (MF, vr(AV, 16), h, ar(b + 4, 4), '0' if t == 0 else vr(AV, 16))]
        fill = []
        nw = 0
        K.wait(lg=4 if t + 1 < 28 else 0)
        if 2 <= t < 10:
            K('s_cmp_lt_u32 s3, 3')
            L = K.skip_begin('s_cbranch_scc0', 'w012')
            for i in (2 * t - 4, 2 * t - 3):
                if i < 12:
                    K('ds_write_b128 v15, %s offset:%d' % (ar(A_WT + 4 * i, 4), LWT + 1024 * i))
                else:
                    K('ds_write_b128 v7, %s offset:%d' % (ar(A_WT + 4 * i, 4), LWT + 36864 + 3072 * (i - 12)))
            K.skip_end(L)
        if t + 1 < 28:
            fill += rd_a(t + 1, (1, 2), A_AB + 8 * ((t + 1) & 1))
            fill += [('s_waitcnt lgkmcnt(%d)' % (4 + nw) if s == 'W' else s) for s in mk_h(t + 1)]
        if t + 2 < 28:
            fill += rd_p(t + 2)
        weave(K, mf, fill)
    pf.stamp('kv gemm')
    KB, VB, PK, FK, TT = 176, 184, 160, 192, 208
    K.wait(vm=0)
    for d in range(8):
        K('v_accvgpr_read_b32 v4, a%d' % (A_WPR + 2 * d))
        K('v_accvgpr_read_b32 v5, a%d' % (A_WPR + 1 + 2 * d))
        K('v_lshl_or_b32 v4, v5, 16, v4')
        K('v_accvgpr_write_b32 a%d, v4' % (A_WP + d))
    cvt16(K, KB, AK)
    for i in (6, 7):
        K('v_cndmask_b32 v%d, v%d, 0, s[42:43]' % (KB + i, KB + i))
    K('%s %s, %s, %s, 0' % (MF, vr(PK, 16), ar(A_WP, 4), vr(KB, 4)))
    K('%s %s, %s, %s, %s' % (MF, vr(PK, 16), ar(A_WP + 4, 4), vr(KB + 4, 4), vr(PK, 16)))
    K('s_cmp_eq_u32 s7, 1')
    L = K.skip_begin('s_cbranch_scc0', 'prep')
    finish_prep(0)
    finish_prep(1)
    K.skip_end(L)
    K('s_cmp_eq_u32 s7, 2')
    L = K.skip_begin('s_cbranch_scc0', 'lmod')
    for i in range(70):
        K('v_accvgpr_write_b32 a%d, v%d' % (128 + i, PR + i))
    K.skip_end(L)
    cvt16(K, VB, AV)
    K('v_mov_b32 v6, s41')
    for i in range(8):
        K('v_cndmask_b32 v%d, v%d, v6, s[46:47]' % (VB + i, VB + i))
        K('v_cndmask_b32 v%d, v%d, 0, s[72:73]' % (VB + i, VB + i))
    softmax_pair(K, PK, TT, FK, FK + 8, 42)
    TP, TN = AK, AV
    for (d, src) in ((TP, FK), (TN, FK + 8)):
        K('%s %s, %s, %s, 0' % (MF, vr(d, 16), vr(src, 4), ar(A_ID, 4)))
    for (d, src) in ((TP, FK), (TN, FK + 8)):
        K('%s %s, %s, %s, %s' % (MF, vr(d, 16), vr(src + 4, 4), ar(A_ID + 4, 4), vr(d, 16)))
    for s in rd_a(0, (0,), A_AB) + rd_a(1, (0,), A_AB + 4):
        K(s)
    cvt16(K, FK, TP)
    cvt16(K, FK + 8, TN)
    KP, KN = TT, TT + 16
    for (d, src) in ((KP, FK), (KN, FK + 8)):
        K('%s %s, %s, %s, 0' % (MF, vr(d, 16), vr(src, 4), vr(VB, 4)))
    for (d, src) in ((KP, FK), (KN, FK + 8)):
        K('%s %s, %s, %s, %s' % (MF, vr(d, 16), vr(src + 4, 4), vr(VB + 4, 4), vr(d, 16)))
    K('s_lshl_b32 s35, s3, 13')
    K('s_add_u32 s35, s35, %d' % LKV)
    K('v_lshl_add_u32 v6, v1, 1, s35')
    for s, d in enumerate((KP, KN)):
        for q in range(4):
            K('ds_write_b128 v6, %s offset:%d' % (vr(d + 4 * q, 4), (2 * s + (q >> 1)) * 2048 + 16 * (q & 1)))
    K.wait(lg=0)
    K('s_barrier')
    K('s_lshl_b32 s35, s3, 11')
    K('v_add_u32 v6, s35, v1')
    R = 160
    K('v_add_u32 v5, %d, v6' % LKV)
    for i in range(2):
        for w in range(4):
            K('ds_read_b128 %s, v5 offset:%d' % (vr(R + 16 * i + 4 * w, 4), 8192 * w + 1024 * i))
    K('s_lshl_b32 s36, s%d, 4' % S_M)
    K('s_add_u32 s36, s36, s%d' % S_G)
    K('s_lshl_b32 s36, s36, 13')
    K('s_add_u32 s36, s36, 0x%x' % KVP)
    for i in range(2):
        b = R + 16 * i
        for (x, y) in ((0, 4), (8, 12), (0, 8)):
            for c in (0, 2):
                K('v_pk_add_f32 v[%d:%d], v[%d:%d], v[%d:%d]' % (b + x + c, b + x + c + 1, b + x + c, b + x + c + 1, b + y + c, b + y + c + 1))
        K('buffer_store_dwordx4 %s, v6, s[8:11], s36 offen offset:%d%s' % (vr(b, 4), 1024 * i, SC))
    pf.stamp('kv out')

    def q_part():
        AQ, QB, PQ, FQ = AK, KB, PK, FK
        for t in range(28):
            K('%s %s, %s, %s, %s' % (MF, vr(AQ, 16), ar(A_AB + 4 * (t % 3), 4), vr(XF + 4 * t, 4), '0' if t == 0 else vr(AQ, 16)))
            if t + 2 < 28:
                for s in rd_a(t + 2, (0,), A_AB + 4 * ((t + 2) % 3)):
                    K(s)
        cvt16(K, QB, AQ)
        for i in (6, 7):
            K('v_cndmask_b32 v%d, v%d, 0, s[42:43]' % (QB + i, QB + i))
        K('%s %s, %s, %s, 0' % (MF, vr(PQ, 16), ar(A_WP, 4), vr(QB, 4)))
        K('%s %s, %s, %s, %s' % (MF, vr(PQ, 16), ar(A_WP + 4, 4), vr(QB + 4, 4), vr(PQ, 16)))
        softmax_pair(K, PQ, TT, FQ, FQ + 8, 42)
        K('s_lshl_b32 s36, s%d, 4' % S_TILE)
        K('s_add_u32 s36, s36, s%d' % S_M)
        K('s_lshl_b32 s36, s36, 12')
        K('s_add_u32 s36, s36, 0x%x' % PHIQ)
        for i in range(4):
            K('buffer_store_dwordx4 %s, v1, s[8:11], s36 offen offset:%d%s' % (vr(FQ + 4 * i, 4), 1024 * i, SC))
    q_part()
    pf.stamp('q out')
    K('s_cmp_eq_u32 s7, 2')
    L = K.skip_begin('s_cbranch_scc0', 'lmod')
    for i in range(70):
        K('v_accvgpr_read_b32 v%d, a%d' % (16 + i, 128 + i))
    mod_compute(16, 72, 88, 96, LKV + 32768, (2, 3, 4, 5))
    K.skip_end(L)
    if not last:
        K.wait(vm=0)
        K('s_barrier')
        K('s_cmp_eq_u32 s3, 3')
        L = K.skip_begin('s_cbranch_scc0', 'w3')
        flag_all(K, FA, 4)
        wait_all(K, FA, 4)
        K.skip_end(L)
        K('s_barrier')
        pf.stamp('barA')


def phase_b(K, pf, first, last):
    if first:
        make_tag(K)
    LO = 114688
    A_KV, A_PH, A_WO = 0, 64, 128
    XR, GR, ACC, T, OB = 16, 24, 40, 104, 112
    K('s_lshr_b32 s35, s%d, 2' % S_M)
    K('s_lshl_b32 s36, s%d, 2' % S_G)
    K('s_add_u32 s35, s35, s36')
    K('s_and_b32 s36, s%d, 3' % S_M)
    K('s_lshl_b32 s44, s36, 2')
    K('s_cmp_eq_u32 s36, 3')
    K('s_cselect_b32 s45, 1, 0')
    K('s_sub_u32 s44, s44, s45')
    K('s_add_u32 s44, s44, s3')
    K('s_lshr_b32 s45, s36, 1')
    K('s_add_u32 s45, s45, s3')

    def early_loads():
        K('s_lshl_b32 s39, s35, 16')
        K('s_lshl_b32 s40, s3, 14')
        K('s_add_u32 s39, s39, s40')
        K('s_add_u32 s39, s39, 0x%x' % PHIQ)
        load_frags(K, A_PH, 16, 39, 41, 'a')
        K('s_cmp_lt_u32 s45, 4')
        L = K.skip_begin('s_cbranch_scc0', 'hasmt')
        K('s_lshl_b32 s38, s44, 15')
        K('s_add_u32 s38, s38, 0x%x' % WO)
        load_frags(K, A_WO, 32, 38, 41, 'a')
        K('v_mul_u32_u24 v4, 896, v2')
        K('v_lshl_add_u32 v4, v3, 3, v4')
        K('s_mul_i32 s38, s35, 28672')
        K('s_lshl_b32 s39, s44, 6')
        K('s_add_u32 s38, s38, s39')
        for q in range(4):
            K('buffer_load_dwordx2 %s, v4, s[12:15], s38 offen offset:%d' % (vr(XR + 2 * q, 2), 16 * q))
        K('v_lshlrev_b32 v5, 6, v3')
        K('s_lshl_b32 s38, s44, 7')
        K('s_add_u32 s38, s38, 0x%x' % GA)
        for q in range(4):
            K('buffer_load_dwordx4 %s, v5, s[8:11], s38 offen offset:%d%s' % (vr(GR + 4 * q, 4), 16 * q, SC))
        K.skip_end(L)
    K('s_cmp_lt_u32 s3, 3')
    L = K.skip_begin('s_cbranch_scc0', 'w012')
    early_loads()
    K.skip_end(L)
    K('s_cmp_eq_u32 s3, 3')
    L = K.skip_begin('s_cbranch_scc0', 'w3')
    K('v_lshlrev_b32 v4, 4, v2')
    K('v_lshl_add_u32 v4, v3, 13, v4')
    K('s_lshl_b32 s38, s%d, 17' % S_M)
    K('s_lshl_b32 s39, s%d, 9' % S_G)
    K('s_add_u32 s38, s38, s39')
    K('s_add_u32 s38, s38, 0x%x' % KVP)
    for i in range(8):
        K('buffer_load_dwordx4 %s, v4, s[8:11], s38 offen%s' % (vr(OB + 4 * i, 4), SC))
        if i < 7:
            K('s_add_u32 s38, s38, 16384')
    for st in (16, 8, 4):
        for r in range(0, st, 2):
            K('v_pk_add_f32 v[%d:%d], v[%d:%d], v[%d:%d]' % (OB + r, OB + r + 1, OB + r, OB + r + 1, OB + r + st, OB + r + st + 1))
    for i in range(4):
        K('v_mov_b32 v%d, v%d' % (OB + 4 + i, OB + i))
    for i in range(4):
        K('v_permlane32_swap_b32 v%d, v%d' % (OB + i, OB + 4 + i))
    for r in (0, 2):
        K('v_pk_add_f32 v[%d:%d], v[%d:%d], v[%d:%d]' % (OB + r, OB + r + 1, OB + r, OB + r + 1, OB + r + 4, OB + r + 5))
    K('v_cvt_pk_bf16_f32 v%d, v%d, v%d' % (OB, OB, OB + 1))
    K('v_cvt_pk_bf16_f32 v%d, v%d, v%d' % (OB + 1, OB + 2, OB + 3))
    K('v_lshlrev_b32 v4, 3, v2')
    K('s_lshl_b32 s38, s%d, 12' % S_M)
    K('s_lshl_b32 s39, s%d, 8' % S_G)
    K('s_add_u32 s38, s38, s39')
    K('s_add_u32 s38, s38, 0x%x' % KVB)
    K('s_mov_b64 exec, 0xffffffff')
    K('buffer_store_dwordx2 %s, v4, s[8:11], s38 offen%s' % (vr(OB, 2), SC))
    K('s_mov_b64 exec, -1')
    K.wait(vm=0)
    flag_all(K, FB, 4)
    early_loads()
    wait_all(K, FB, 8)
    K.skip_end(L)
    K('s_barrier')
    pf.stamp('barB')
    K('s_lshl_b32 s38, s3, 14')
    K('s_add_u32 s38, s38, 0x%x' % KVB)
    load_frags(K, A_KV, 16, 38, 41, 'a')
    K('s_lshl_b32 s38, s3, 13')
    K('s_add_u32 s38, s38, %d' % LO)
    K('v_add_u32 v6, s38, v1')
    for hh in range(4):
        a = ACC + 16 * hh
        for i in range(4):
            K('%s %s, %s, %s, %s' % (MF, vr(a, 16), ar(A_KV + 16 * hh + 4 * i, 4), ar(A_PH + 16 * hh + 4 * i, 4), '0' if i == 0 else vr(a, 16)))
    for hh in range(4):
        a = ACC + 16 * hh
        t = T + 2 * hh
        K('v_mov_b32 v%d, v%d' % (t, a + 12))
        K('v_permlane32_swap_b32 v%d, v%d' % (a + 12, t))
        K('v_add_f32 v%d, 0x%x, v%d' % (t, 0x358637bd, t))
        K('v_rcp_f32 v%d, v%d' % (t, t))
        K('v_mov_b32 v%d, v%d' % (t + 1, t))
        o = OB + 8 * hh
        for i in range(8):
            K('v_pk_mul_f32 v[%d:%d], v[%d:%d], v[%d:%d]' % (a + 2 * i, a + 2 * i + 1, a + 2 * i, a + 2 * i + 1, t, t + 1))
            K('v_cvt_pk_bf16_f32 v%d, v%d, v%d' % (o + i, a + 2 * i, a + 2 * i + 1))
        K('ds_write_b128 v6, %s offset:%d' % (vr(o, 4), 2048 * hh))
        K('ds_write_b128 v6, %s offset:%d' % (vr(o + 4, 4), 2048 * hh + 1024))
    K.wait(lg=0)
    K('s_barrier')
    pf.stamp('o')
    K('s_cmp_lt_u32 s45, 4')
    L = K.skip_begin('s_cbranch_scc0', 'hasmt')
    K('v_add_u32 v6, %d, v1' % LO)
    for i in range(32):
        K('ds_read_b128 %s, v6 offset:%d' % (vr(OB + 4 * i, 4), 1024 * i))
    for i in range(32):
        a = ACC + 16 * (i & 1)
        K('%s %s, %s, %s, %s' % (MF, vr(a, 16), ar(A_WO + 4 * i, 4), vr(OB + 4 * i, 4), '0' if i < 2 else vr(a, 16)))
    U = 72
    for i in range(8):
        unpack(K, U + 2 * i, U + 2 * i + 1, XR + i)
    K('s_mul_i32 s38, s35, 28672')
    K('s_lshl_b32 s39, s44, 11')
    K('s_add_u32 s38, s38, s39')
    K('s_add_u32 s38, s38, 0x%x' % X1)
    K('s_mul_i32 s40, s35, 7168')
    K('s_lshr_b32 s39, s44, 1')
    K('s_lshl_b32 s39, s39, 10')
    K('s_add_u32 s40, s40, s39')
    K('s_and_b32 s39, s44, 1')
    K('s_lshl_b32 s39, s39, 3')
    K('s_add_u32 s40, s40, s39')
    K('s_add_u32 s40, s40, 0x%x' % STATS)
    for i in range(8):
        K('v_pk_add_f32 v[%d:%d], v[%d:%d], v[%d:%d]' % (ACC + 2 * i, ACC + 2 * i + 1, ACC + 2 * i, ACC + 2 * i + 1, ACC + 16 + 2 * i, ACC + 17 + 2 * i))
        K('v_pk_fma_f32 v[%d:%d], v[%d:%d], v[%d:%d], v[%d:%d]' % (U + 2 * i, U + 2 * i + 1, ACC + 2 * i, ACC + 2 * i + 1, GR + 2 * i, GR + 2 * i + 1, U + 2 * i, U + 2 * i + 1))
    O = 88
    cvt16(K, O, U)
    K('buffer_store_dwordx4 %s, v1, s[8:11], s38 offen%s' % (vr(O, 4), SC))
    K('buffer_store_dwordx4 %s, v1, s[8:11], s38 offen offset:1024%s' % (vr(O + 4, 4), SC))
    K('s_mov_b32 s41, 0x3f803f80')
    K('v_mov_b32 v%d, 0' % T)
    K('v_mov_b32 v%d, 0' % (T + 1))
    for i in range(8):
        K('v_dot2c_f32_bf16 v%d, s41, v%d' % (T, O + i))
        K('v_dot2c_f32_bf16 v%d, v%d, v%d' % (T + 1, O + i, O + i))
    K('buffer_store_dwordx2 %s, v1, s[8:11], s40 offen%s' % (vr(T, 2), SC))
    if not last:
        K.wait(vm=0)
        K('s_lshl_b32 s38, s35, 4')
        K('s_add_u32 s38, s38, s44')
        K('s_lshl_b32 s38, s38, 4')
        K('s_add_u32 s38, s38, 0x%x' % FX)
        K('v_mov_b32 v4, s%d' % S_TAG)
        K('v_mov_b32 v5, 0')
        K('s_mov_b64 exec, 1')
        K('buffer_store_dword v4, v5, s[8:11], s38 offen%s' % SC)
        K('s_mov_b64 exec, -1')
    K.skip_end(L)
    pf.stamp('x1 out')


def phase_c(K, pf, first, last):
    CH = 28672
    LP = 5 * CH
    XF, ACC, PB, T = 8, 120, 232, 248
    ST = ACC
    RS, NM = 0, 7
    if first and not last:
        make_tag(K)
    if not first:
        K('s_barrier')
    K('s_lshl_b32 s38, s3, 10')
    K('s_add_u32 m0, s38, %d' % LP)
    K('s_add_u32 s38, s38, 0x%x' % P2)
    K('buffer_load_dwordx4 v1, s[8:11], s38 offen%s lds' % SC)
    K('s_mul_i32 s42, s3, 7168')
    K('s_mul_i32 s43, s%d, %d' % (S_M, 196 * 1024))
    K('s_add_u32 s43, s43, s42')
    K('s_add_u32 s43, s43, 0x%x' % WGU)
    K('s_mul_i32 s44, s%d, 28672' % S_TILE)
    K('s_add_u32 s44, s44, 0x%x' % X1)
    dm = {}

    def chunk(c):
        K('s_add_u32 s45, s43, %d' % (c * CH))
        K('s_add_u32 s46, s42, %d' % ((c % 5) * CH))
        dm[c] = dma_frags(K, 7, 45, 46, 41)

    def stats_loads():
        K('s_mul_i32 s38, s%d, 7168' % S_TILE)
        K('s_add_u32 s38, s38, 0x%x' % STATS)
        load_frags(K, ST, 7, 38, 41)
    if first:
        stats_loads()
        for c in range(5):
            chunk(c)
            n = 4 if c < 4 else 12
            K('s_add_u32 s45, s44, %d' % (4096 * c))
            load_frags(K, XF + 16 * c, n, 45, 41)
    else:
        for c in range(5):
            chunk(c)
        K('s_lshl_b32 s38, s%d, 8' % S_TILE)
        K('s_add_u32 s38, s38, 0x%x' % FX)
        K('v_min_u32 v4, 208, v1')
        poll(K, ['buffer_load_dword v5, v4, s[8:11], s38 offen%s' % SC], [5], 6)
        pf.stamp('x1 in')
        stats_loads()
        load_frags(K, XF, 28, 44, 41)
    K('v_lshlrev_b32 v4, 6, v3')
    K('v_add_u32 v4, %d, v4' % LP)
    K('v_add_u32 v5, 0x10000, v1')
    K('v_add_u32 v6, 0x20000, v1')
    for i in range(1, 7):
        K('v_pk_add_f32 v[%d:%d], v[%d:%d], v[%d:%d]' % (ST, ST + 1, ST, ST + 1, ST + 4 * i, ST + 4 * i + 1))
        K('v_pk_add_f32 v[%d:%d], v[%d:%d], v[%d:%d]' % (ST + 2, ST + 3, ST + 2, ST + 3, ST + 4 * i + 2, ST + 4 * i + 3))
    K('v_pk_add_f32 v[%d:%d], v[%d:%d], v[%d:%d]' % (ST, ST + 1, ST, ST + 1, ST + 2, ST + 3))
    rowstats(K, ST, ST + 1, ST + 2, ST + 3, RS, NM)

    def rd_a(t):
        b = 28 * (t & 1)
        o = []
        for m in range(7):
            off = ((t // 4) % 5) * CH + ((t % 4) * 7 + m) * 1024
            base = (1, 5, 6)[off >> 16]
            o.append('ds_read_b128 a[%d:%d], v%d offset:%d' % (b + 4 * m, b + 4 * m + 3, base, off & 0xffff))
        return o

    def rd_p(t):
        return ['ds_read_b128 v[%d:%d], v4 offset:%d' % (PB + 4 * i, PB + 4 * i + 3, 128 * t + 16 * i) for i in range(4)]

    def mk_h(t):
        o = []
        for i in range(4):
            x = XF + 4 * t + i
            o += ['v_lshlrev_b32 v%d, 16, v%d' % (T + 2 * i, x), 'v_and_b32 v%d, 0xffff0000, v%d' % (T + 2 * i + 1, x)]
        o += ['v_fma_f32 v%d, v%d, v%d, v%d' % (T + i, T + i, RS, NM) for i in range(8)]
        o += ['v_fmac_f32 v%d, v%d, v%d' % (PB + 8 + i, T + i, PB + i) for i in range(8)]
        o += ['v_cvt_pk_bf16_f32 v%d, v%d, v%d' % (XF + 4 * t + i, PB + 8 + 2 * i, PB + 9 + 2 * i) for i in range(4)]
        return o
    K.wait_for(dm[0][-1])
    K('s_barrier')
    pf.stamp('c go')
    for s in rd_p(0) + rd_a(0) + mk_h(0) + rd_p(1):
        K(s)
    for t in range(28):
        if (t + 1) % 4 == 0 and t + 1 < 28:
            c = (t + 1) // 4
            K.wait_for(dm[c][-1])
            K('s_barrier')
            if c in (2, 3):
                chunk(c + 3)
        b = 28 * (t & 1)
        h = vr(XF + 4 * t, 4)
        mf = ['%s %s, %s, %s, %s' % (MF, vr(ACC + 16 * m, 16), ar(b + 4 * m, 4), h, '0' if t == 0 else vr(ACC + 16 * m, 16)) for m in range(7)]
        fill = []
        if t + 1 < 28:
            ra, mh = rd_a(t + 1), mk_h(t + 1)
            for i in range(7):
                fill += [ra[i], mh[i]]
            fill += mh[7:16] + ['s_waitcnt lgkmcnt(7)'] + mh[16:]
        K.wait(lg=4 if t + 1 < 28 else 0)
        if t + 2 < 28:
            fill += rd_p(t + 2)
        weave(K, mf, fill)
    pf.stamp('c gemm')
    K('s_mul_i32 s38, s%d, %d' % (S_TILE, 112 * 1024))
    K('s_mul_i32 s39, s%d, 7168' % S_M)
    K('s_add_u32 s38, s38, s39')
    K('s_add_u32 s38, s38, 0x%x' % HH)
    K('s_add_u32 s39, s38, 4096')
    for m in range(7):
        g = ACC + 16 * m
        for i in range(4):
            K('v_pk_mul_f32 v[%d:%d], v[%d:%d], v[%d:%d]' % (g + 2 * i, g + 2 * i + 1, g + 2 * i, g + 2 * i + 1, g + 8 + 2 * i, g + 9 + 2 * i))
        for i in range(4):
            K('v_cvt_pk_bf16_f32 v%d, v%d, v%d' % (g + 8 + i, g + 2 * i, g + 2 * i + 1))
        K('buffer_store_dwordx4 %s, v1, s[8:11], s%d offen offset:%d%s' % (vr(g + 8, 4), 38 + m // 4, 1024 * (m % 4), SC))
    if not last:
        K.wait(vm=0)
        K('s_lshl_b32 s38, s%d, 4' % S_TILE)
        K('s_add_u32 s38, s38, s%d' % S_M)
        K('s_lshl_b32 s38, s38, 4')
        K('s_add_u32 s38, s38, 0x%x' % FH)
        K('v_mov_b32 v4, s%d' % S_TAG)
        K('v_mov_b32 v5, 0')
        K('s_mov_b64 exec, 1')
        K('buffer_store_dword v4, v5, s[8:11], s38 offen%s' % SC)
        K('s_mov_b64 exec, -1')
    pf.stamp('hh out')


def phase_d(K, pf, first):
    if first:
        make_tag(K)
    K('s_cmp_eq_u32 s2, 0')
    L = K.skip_begin('s_cbranch_scc0')
    K('v_mov_b32 v4, s%d' % S_TAG)
    K('v_mov_b32 v5, 0')
    K('s_mov_b64 exec, 1')
    K('buffer_store_dword v4, v5, s[8:11], 0 offen offset:%d' % EPOCH)
    K('s_mov_b64 exec, -1')
    K.skip_end(L)
    K('s_cmp_lt_u32 s%d, 14' % S_M)
    Lall = K.skip_begin('s_cbranch_scc0')
    srd(K, 24, K_OUT, 2048 * 896)
    K('s_cmp_ge_u32 s%d, 7' % S_M)
    K('s_cselect_b32 s35, 1, 0')
    K('s_cselect_b32 s36, 7, 0')
    K('s_sub_u32 s36, s%d, s36' % S_M)
    K('s_lshl_b32 s37, s%d, 1' % S_G)
    K('s_add_u32 s35, s35, s37')
    RING, DEP = 16, 14
    XR = 240
    K('s_mul_i32 s38, s36, %d' % (112 * 2048))
    K('s_mul_i32 s39, s3, %d' % (28 * 2048))
    K('s_add_u32 s38, s38, s39')
    K('s_add_u32 s38, s38, 0x%x' % WD)
    K('s_mul_i32 s39, s35, %d' % (2 * 112 * 1024))
    K('s_mul_i32 s40, s3, %d' % (28 * 1024))
    K('s_add_u32 s39, s39, s40')
    K('s_add_u32 s39, s39, 0x%x' % HH)
    K('s_add_u32 s40, s39, %d' % (112 * 1024))
    if not first:
        K('s_lshl_b32 s46, s35, 9')
        K('s_lshl_b32 s47, s3, 6')
        K('s_add_u32 s46, s46, s47')
        K('s_add_u32 s46, s46, 0x%x' % FH)
        K('v_and_b32 v4, 0x30, v1')
        K('v_and_b32 v5, 0x40, v1')
        K('v_lshl_add_u32 v4, v5, 2, v4')
        poll(K, ['buffer_load_dword v5, v4, s[8:11], s46 offen%s' % SC], [5], 6)
        pf.stamp('hh in')

    def loads(t):
        b = RING + 16 * (t % DEP)
        o = []
        if t % 2 == 0 and t:
            o.append('s_add_u32 s38, s38, 4096')
        if t % 4 == 0 and t:
            o.append('s_add_u32 s39, s39, 4096')
            o.append('s_add_u32 s40, s40, 4096')
        o.append('buffer_load_dwordx4 %s, v1, s[8:11], s38 offen offset:%d%s' % (vr(b, 4), 2048 * (t % 2), SC))
        o.append('buffer_load_dwordx4 %s, v1, s[8:11], s39 offen offset:%d%s' % (vr(b + 8, 4), 1024 * (t % 4), SC))
        o.append('buffer_load_dwordx4 %s, v1, s[8:11], s38 offen offset:%d%s' % (vr(b + 4, 4), 2048 * (t % 2) + 1024, SC))
        o.append('buffer_load_dwordx4 %s, v1, s[8:11], s40 offen offset:%d%s' % (vr(b + 12, 4), 1024 * (t % 4), SC))
        return o
    for t in range(DEP):
        for s in loads(t):
            K(s)
    K('s_and_b32 s42, s3, 1')
    K('s_lshr_b32 s43, s3, 1')
    K('s_lshl_b32 s44, s36, 1')
    K('s_add_u32 s44, s44, s42')
    K('s_lshl_b32 s45, s35, 1')
    K('s_add_u32 s45, s45, s43')
    K('v_and_b32 v2, 0x1f0, v1')
    K('v_lshrrev_b32 v3, 9, v1')
    K('v_lshlrev_b32 v5, 6, v3')
    K('v_mul_u32_u24 v4, 56, v2')
    K('v_lshl_add_u32 v4, v3, 4, v4')
    for t in range(28):
        b = RING + 16 * (t % DEP)
        for ni in range(2):
            for mi in range(2):
                a = ar(16 * (2 * ni + mi), 16)
                K('%s %s, %s, %s, %s' % (MF, a, vr(b + 4 * mi, 4), vr(b + 8 + 4 * ni, 4), '0' if t == 0 else a))
        if t == 0:
            pf.stamp('d first')
        if t + DEP < 28:
            for s in loads(t + DEP):
                K(s)
        if t == 14:
            K('s_mul_i32 s46, s45, 28672')
            K('s_lshl_b32 s47, s44, 11')
            K('s_add_u32 s46, s46, s47')
            K('s_add_u32 s46, s46, 0x%x' % X1)
            load_frags(K, XR, 2, 46, 41)
            K('s_lshl_b32 s46, s44, 7')
            K('s_add_u32 s46, s46, 0x%x' % GB)
            for q in range(4):
                K('buffer_load_dwordx4 %s, v5, s[8:11], s46 offen offset:%d%s' % (ar(64 + 4 * q, 4), 16 * q, SC))
    pf.stamp('d gemm')
    if not first:
        K('s_barrier')
    K('s_lshl_b32 s46, s3, 14')
    K('v_add_u32 v6, s46, v1')
    for tl in range(4):
        K('s_cmp_lg_u32 s3, %d' % tl)
        L = K.skip_begin('s_cbranch_scc0')
        for q in range(4):
            K('ds_write_b128 v6, %s offset:%d' % (ar(16 * tl + 4 * q, 4), 4096 * tl + 1024 * q))
        K.skip_end(L)
    for tl in range(4):
        K('s_cmp_eq_u32 s3, %d' % tl)
        L = K.skip_begin('s_cbranch_scc0')
        for i in range(16):
            K('v_accvgpr_read_b32 v%d, a%d' % (16 + i, 16 * tl + i))
        K.skip_end(L)
    K.wait(lg=0)
    K('s_barrier')
    K('s_lshl_b32 s46, s3, 12')
    K('v_add_u32 v6, s46, v1')
    for k in range(1, 4):
        K('s_add_u32 s46, s3, %d' % k)
        K('s_and_b32 s46, s46, 3')
        K('s_lshl_b32 s46, s46, 14')
        K('v_add_u32 v7, s46, v6')
        for q in range(4):
            K('ds_read_b128 %s, v7 offset:%d' % (vr(16 + 16 * k + 4 * q, 4), 1024 * q))
    U, G = 96, 112
    for i in range(8):
        unpack(K, U + 2 * i, U + 2 * i + 1, XR + i)
    for i in range(16):
        K('v_accvgpr_read_b32 v%d, a%d' % (G + i, 64 + i))
    for k in range(1, 4):
        for i in range(8):
            K('v_pk_add_f32 v[%d:%d], v[%d:%d], v[%d:%d]' % (16 + 2 * i, 17 + 2 * i, 16 + 2 * i, 17 + 2 * i, 16 + 16 * k + 2 * i, 17 + 16 * k + 2 * i))
    for i in range(8):
        K('v_pk_fma_f32 v[%d:%d], v[%d:%d], v[%d:%d], v[%d:%d]' % (U + 2 * i, U + 2 * i + 1, 16 + 2 * i, 17 + 2 * i, G + 2 * i, G + 2 * i + 1, U + 2 * i, U + 2 * i + 1))
    O = 80
    cvt16(K, O, U)
    for b in (0, 4):
        K('v_permlane32_swap_b32 v%d, v%d' % (O + b, O + b + 2))
        K('v_permlane32_swap_b32 v%d, v%d' % (O + b + 1, O + b + 3))
    K('s_mul_i32 s46, s45, 28672')
    K('s_lshl_b32 s47, s44, 6')
    K('s_add_u32 s46, s46, s47')
    K('buffer_store_dwordx4 %s, v4, s[24:27], s46 offen' % vr(O, 4))
    K('buffer_store_dwordx4 %s, v4, s[24:27], s46 offen offset:32' % vr(O + 4, 4))
    K.skip_end(Lall)


def main():
    Kern.excl = [{'prep', 'lmod'}, {'w3', 'w012'}, {'w3', 'prep'}]
    groups = {0: ['a', 'b', 'c', 'd'], 1: ['ab', 'c', 'd'], 2: ['abc', 'd'], 3: ['abcd']}[FUSE]
    ks = []
    for kid, gname in enumerate(groups):
        name = NAME + '_kernel' if len(groups) == 1 else 'phase_%s_kernel' % gname
        K = Kern(name)
        pf = Prof(K, kid)
        f_end = head(K, pf)
        for i, ph in enumerate(gname):
            first, last = i == 0, i == len(gname) - 1
            K.c('================ phase %s' % ph)
            if ph == 'a':
                phase_a(K, pf, last)
            elif ph == 'b':
                phase_b(K, pf, first, last)
            elif ph == 'c':
                phase_c(K, pf, first, last)
            else:
                phase_d(K, pf, first)
        if PROF:
            K.wait(vm=0)
        pf.flush(4)
        K.end()
        K.resume(f_end)
        K.end()
        ks.append(K)
    hdr = open('cdna_kernels/%s.s.ref' % NAME).read().split('\n')
    out = [l for l in hdr if l.startswith(';') and '@launch' not in l and 'Override launch' not in l and 'grid=ceil' not in l][:14]
    for K in ks:
        if len(ks) == 1:
            out.append('; @launch grid=(256,1,1) block=(256,1,1) lds=163840')
        else:
            out.append('; @launch kernel=%s grid=(256,1,1) block=(256,1,1) lds=163840' % K.name)
    out += ['.amdgcn_target "amdgcn-amd-amdhsa--gfx950"', '.text']
    for K in ks:
        out.append(K.render())
    out.append('.section .rodata,"a"')
    for K in ks:
        out.append(K.descriptor())
    dst = [a for a in sys.argv[1:] if not a.startswith('--')][0]
    open(dst, 'w').write('\n'.join(out) + '\n')
    for K in ks:
        n = sum(isinstance(i, Ins) for i in K.items)
        print(K.name[:30], 'v%d a%d s%d' % (K.maxv + 1, K.maxa + 1, K.maxs + 1), 'instrs', n)


main()
```

```python
import sys
from asmlib import *

NAME = 'adaLN_cond__linear_kernel_hedgehog__glu_gated_bilinear__prompt'
PROF = '--prof' in sys.argv


def opt(name, default):
    for a in sys.argv:
        if a.startswith('--%s=' % name):
            return int(a.split('=')[1], 0)
    return default


FUSE = opt('fuse', 0)
NPRE = opt('npre', 8)
ROT = opt('rot', 1)
SPIN = 40000
DBG = opt('dbg', -1)
SKIPST = ('karg', 'issued', 'stats', 'pre-go', 'mod', 'd first', 'x', 'q out')
CYC = opt('cyc', 0)

EPOCH = 0x0
P2, GA, GB = 0x1000, 0x2000, 0x2800
MODG = 0x4000
FA, FB = 0x8000, 0x10000
FX, FH = 0x18000, 0x1C000
KVB = 0x20000
STATS = 0x30000
KVP = 0x100000
X1 = 0x300000
WO, WGU, WD = 0x5E0000, 0x650000, 0x960000
PHIQ, HH = 0xB00000, 0xF00000
TS = 0x2000000
WS_BYTES = 0x10000000
LOG2E = 0x3fb8aa3b
OOB = 0x7f000000
MF = 'v_mfma_f32_32x32x16_bf16'
SC = ' sc1'

S_TAG, S_G, S_M, S_TILE, S_X = 28, 29, 30, 31, 32
K_X, K_WQKV, K_WPHI, K_WO, K_WG, K_WU, K_WD, K_C, K_WMOD, K_OUT = 48, 50, 52, 54, 58, 60, 62, 64, 66, 68
S_TS = 80


def srd(K, s, sptr, nbytes):
    K('s_mov_b32 s%d, s%d' % (s, sptr))
    K('s_and_b32 s%d, s%d, 0xffff' % (s + 1, sptr + 1))
    K('s_mov_b32 s%d, 0x%x' % (s + 2, nbytes))
    K('s_mov_b32 s%d, 0x20000' % (s + 3))


class Prof:
    def __init__(self, K, kid):
        self.K, self.kid, self.n = K, kid, 0
        self.names = []

    def stamp(self, name=''):
        if PROF and not (FUSE >= 2 and name in SKIPST):
            assert self.n < 16, 'too many stamps'
            K = self.K
            K('s_memtime s[98:99]' if CYC else 's_memrealtime s[98:99]')
            K.wait(lg=0)
            K('s_mov_b32 s%d, s98' % (S_TS + self.n))
            self.n += 1
            self.names.append(name)

    def flush(self, vtmp):
        if not PROF:
            return
        K = self.K
        self.stamp('end')
        K('s_lshl_b32 s96, s2, 2')
        K('s_add_u32 s96, s96, s3')
        K('s_lshl_b32 s96, s96, 6')
        K('s_add_u32 s96, s96, 0x%x' % (TS + self.kid * 0x10000))
        K('v_mov_b32 v%d, 0' % (vtmp + 1))
        for i in range(self.n):
            K('v_mov_b32 v%d, s%d' % (vtmp, S_TS + i))
            K('buffer_store_dword v%d, v%d, s[8:11], s96 offen offset:%d' % (vtmp, vtmp + 1, 4 * i))
            K('s_nop 1')
        if DBG >= 0:
            K('s_cmp_eq_u32 s2, %d' % DBG)
            L = K.skip_begin('s_cbranch_scc0')
            srd(K, 20, 70, 256)
            for i in range(1, self.n):
                K('s_sub_u32 s96, s%d, s%d' % (S_TS + i, S_TS))
                K('v_mov_b32 v%d, s96' % vtmp)
                K('buffer_store_dword v%d, v%d, s[20:23], 0 offen offset:%d' % (vtmp, vtmp + 1, 4 * i))
                K('s_nop 1')
            K.skip_end(L)
        print('   stamps k%d:' % self.kid, ' '.join(self.names))


def unpack(K, lo, hi, src):
    K('v_lshlrev_b32 v%d, 16, v%d' % (lo, src))
    K('v_and_b32 v%d, 0xffff0000, v%d' % (hi, src))


def weave(K, mfmas, fill):
    n = len(mfmas)
    done = 0
    for i, m in enumerate(mfmas):
        K(m)
        upto = (len(fill) * (i + 1) + n - 1) // n
        while done < upto:
            f = fill[done]
            if callable(f):
                f()
            else:
                K(f)
            done += 1


def head(K, pf):
    pf.stamp('start')
    K('s_cmp_ge_u32 s2, 256')
    f_end = K.fork('s_cbranch_scc1')
    K('s_load_dwordx2 s[4:5], s[0:1], 96')
    K('s_load_dwordx8 s[48:55], s[0:1], 0')
    K('s_load_dwordx8 s[56:63], s[0:1], 32')
    K('s_load_dwordx8 s[64:71], s[0:1], 64')
    K('v_lshrrev_b32 v1, 6, v0')
    K('v_readfirstlane_b32 s3, v1')
    K('v_and_b32 v1, 63, v0')
    K('v_lshlrev_b32 v1, 4, v1')
    K('v_and_b32 v2, 31, v0')
    K('v_bfe_u32 v3, v0, 5, 1')
    K('s_and_b32 s%d, s2, 7' % S_X)
    K('s_lshr_b32 s33, s2, 3')
    K('s_lshl_b32 s%d, s%d, 1' % (S_G, S_X))
    K('s_lshr_b32 s34, s33, 4')
    K('s_add_u32 s%d, s%d, s34' % (S_G, S_G))
    K('s_and_b32 s%d, s33, 15' % S_M)
    K('s_lshl_b32 s%d, s%d, 2' % (S_TILE, S_G))
    K('s_add_u32 s%d, s%d, s3' % (S_TILE, S_TILE))
    K.wait(lg=0)
    pf.stamp('karg')
    K('s_load_dword s6, s[4:5], 0x%x' % EPOCH)
    srd(K, 8, 4, WS_BYTES)
    srd(K, 12, K_X, 2048 * 896)
    return f_end


def make_tag(K):
    K.wait(lg=0)
    K('s_mul_i32 s%d, s6, 0x9e3779b1' % S_TAG)
    K('s_add_u32 s%d, s%d, 0x7f4a7c15' % (S_TAG, S_TAG))


def load_frags(K, dst, n, sbase, stmp, kind='v', flags=SC):
    out = []
    for i in range(n):
        if i % 4 == 0:
            if i == 0:
                cur = sbase
            else:
                K('s_add_u32 s%d, s%d, %d' % (stmp, sbase, 1024 * i))
                cur = stmp
        out.append(K('buffer_load_dwordx4 %s, v1, s[8:11], s%d offen offset:%d%s' % (vr(dst + 4 * i, 4, kind), cur, 1024 * (i % 4), flags)))
    return out


def dma_frags(K, n, smem, slds, stmp, flags=SC):
    out = []
    for i in range(n):
        if i % 4 == 0:
            K('s_add_u32 m0, s%d, %d' % (slds, 1024 * i))
            if i == 0:
                cur = smem
            else:
                K('s_add_u32 s%d, s%d, %d' % (stmp, smem, 1024 * i))
                cur = stmp
        out.append(K('buffer_load_dwordx4 v1, s[8:11], s%d offen offset:%d%s lds' % (cur, 1024 * (i % 4), flags)))
    return out


def poll(K, loads, tags, vacc):
    L = K.label('poll')
    Lx = K.label('pollx')
    K('s_mov_b32 s33, %d' % SPIN)
    K.raw(L + ':')
    for t in loads:
        K(t)
    K.wait(vm=0)
    K('v_xor_b32 v%d, s%d, v%d' % (vacc, S_TAG, tags[0]))
    for t in tags[1:]:
        K('v_bitop3_b32 v%d, v%d, v%d, s%d bitop3:0xf6' % (vacc, vacc, t, S_TAG))
    K('v_cmp_ne_u32 vcc, 0, v%d' % vacc)
    K('s_sub_u32 s33, s33, 1')
    K('s_cbranch_scc1 %s' % Lx)
    K('s_cbranch_vccnz %s' % L)
    K.raw(Lx + ':')


def flag_all(K, base, vtmp):
    K('v_lshlrev_b32 v%d, 8, v1' % vtmp)
    K('v_mov_b32 v%d, s%d' % (vtmp + 1, S_TAG))
    K('s_lshl_b32 s33, s2, 4')
    K('s_add_u32 s33, s33, 0x%x' % base)
    K('s_mov_b64 exec, 0xff')
    K('buffer_store_dword v%d, v%d, s[8:11], s33 offen%s' % (vtmp + 1, vtmp, SC))
    K('s_mov_b64 exec, -1')


def wait_all(K, base, vtmp):
    K('s_lshl_b32 s34, s%d, 12' % S_X)
    K('s_add_u32 s34, s34, 0x%x' % base)
    poll(K, ['buffer_load_dword v%d, v1, s[8:11], s34 offen offset:%d%s' % (vtmp + k, 1024 * k, SC) for k in range(4)],
         [vtmp + k for k in range(4)], vtmp + 4)


def softmax_pair(K, X, T, OUTP, OUTN, s_up):
    mx, mn, t0, t1, bp, bn = T, T + 1, T + 2, T + 3, T + 4, T + 5
    E = T + 8
    for (d, op3, op2) in ((mx, 'v_max3_f32', 'v_max_f32'), (mn, 'v_min3_f32', 'v_min_f32')):
        t = t0 if d == mx else t1
        K('%s v%d, v%d, v%d, v%d' % (op3, d, X, X + 1, X + 2))
        K('%s v%d, v%d, v%d, v%d' % (op3, t, X + 12, X + 13, X + 14))
        for i in range(3, 11, 2):
            K('%s v%d, v%d, v%d, v%d' % (op3, d, d, X + i, X + i + 1))
        K('%s v%d, v%d, v%d' % (op2, t, t, X + 15))
        K('%s v%d, v%d, v%d' % (op2, d, d, X + 11))
        K('v_cndmask_b32 v%d, v%d, v%d, s[%d:%d]' % (t, t, d, s_up, s_up + 1))
        K('%s v%d, v%d, v%d' % (op2, d, d, t))
    K('v_mov_b32 v%d, v%d' % (t0, mx))
    K('v_mov_b32 v%d, v%d' % (t1, mn))
    K('v_permlane32_swap_b32 v%d, v%d' % (mx, t0))
    K('v_permlane32_swap_b32 v%d, v%d' % (mn, t1))
    K('v_max_f32 v%d, v%d, v%d' % (mx, mx, t0))
    K('v_min_f32 v%d, v%d, v%d' % (mn, mn, t1))
    K('v_mul_f32 v%d, 0x%x, v%d' % (mx, LOG2E | 0x80000000, mx))
    K('v_mul_f32 v%d, 0x%x, v%d' % (mn, LOG2E, mn))
    K('v_mov_b32 v%d, 0xff800000' % t0)
    K('v_cndmask_b32 v%d, v%d, v%d, s[%d:%d]' % (bp, mx, t0, s_up, s_up + 1))
    K('v_cndmask_b32 v%d, v%d, v%d, s[%d:%d]' % (bn, mn, t0, s_up, s_up + 1))
    for i in range(16):
        K('v_fma_f32 v%d, v%d, s40, v%d' % (E + i, X + i, bp if i >= 12 else mx))
        K('v_fma_f32 v%d, -v%d, s40, v%d' % (E + 16 + i, X + i, bn if i >= 12 else mn))
    for i in range(32):
        K('v_exp_f32 v%d, v%d' % (E + i, E + i))
    sp, sn = T, T + 2
    for (s, b) in ((sp, E), (sn, E + 16)):
        K('v_pk_add_f32 v[%d:%d], v[%d:%d], v[%d:%d]' % (s, s + 1, b, b + 1, b + 2, b + 3))
    for i in range(4, 16, 2):
        for (s, b) in ((sp, E), (sn, E + 16)):
            K('v_pk_add_f32 v[%d:%d], v[%d:%d], v[%d:%d]' % (s, s + 1, s, s + 1, b + i, b + i + 1))
    for s in (sp, sn):
        K('v_add_f32 v%d, v%d, v%d' % (s, s, s + 1))
    for s in (sp, sn):
        K('v_mov_b32 v%d, v%d' % (s + 1, s))
    for s in (sp, sn):
        K('v_permlane32_swap_b32 v%d, v%d' % (s, s + 1))
    for s in (sp, sn):
        K('v_add_f32 v%d, v%d, v%d' % (s, s, s + 1))
    for s in (sp, sn):
        K('v_rcp_f32 v%d, v%d' % (s, s))
    for s in (sp, sn):
        K('v_mov_b32 v%d, v%d' % (s + 1, s))
    for i in range(8):
        for (s, b, o) in ((sp, E, OUTP), (sn, E + 16, OUTN)):
            K('v_pk_mul_f32 v[%d:%d], v[%d:%d], v[%d:%d]' % (b + 2 * i, b + 2 * i + 1, b + 2 * i, b + 2 * i + 1, s, s + 1))
        for (s, b, o) in ((sp, E, OUTP), (sn, E + 16, OUTN)):
            K('v_cvt_pk_bf16_f32 v%d, v%d, v%d' % (o + i, b + 2 * i, b + 2 * i + 1))


def cvt16(K, dst, src):
    for i in range(8):
        K('v_cvt_pk_bf16_f32 v%d, v%d, v%d' % (dst + i, src + 2 * i, src + 2 * i + 1))


def rowstats(K, S, Q, t0, t1, RS, NM):
    K('v_mov_b32 v%d, v%d' % (t0, S))
    K('v_mov_b32 v%d, v%d' % (t1, Q))
    K('v_permlane32_swap_b32 v%d, v%d' % (S, t0))
    K('v_permlane32_swap_b32 v%d, v%d' % (Q, t1))
    K('v_add_f32 v%d, v%d, v%d' % (S, S, t0))
    K('v_add_f32 v%d, v%d, v%d' % (Q, Q, t1))
    K('v_mul_f32 v%d, 0x3b124925, v%d' % (NM, S))
    K('v_mov_b32 v%d, 0x3727c5ac' % t0)
    K('v_mov_b32 v%d, v%d' % (RS, t0))
    K('v_fmac_f32 v%d, 0x3b124925, v%d' % (RS, Q))
    K('v_fma_f32 v%d, -v%d, v%d, v%d' % (RS, NM, NM, RS))
    K('v_max_f32 v%d, v%d, v%d' % (RS, RS, t0))
    K('v_rsq_f32 v%d, v%d' % (RS, RS))
    K('v_mul_f32 v%d, -1.0, v%d' % (NM, NM))
    K('v_mul_f32 v%d, v%d, v%d' % (NM, NM, RS))


DORD = [(j & 3) + 8 * (j >> 2) for j in range(8)]


def phase_a(K, pf, last):
    LX, LWH, LSCR = 0, 114688, 151552
    LP1 = LSCR
    LP1E = LSCR + 8192
    LWT, LKV = 0, 49152
    NH = 12
    XF, AK, AV, PB, T, PR = 16, 128, 144, 160, 176, 184
    RS, NM = 8, 10
    A_AB, A_WP, A_ID, A_WT, A_WPR = 0, 16, 24, 32, 96
    srd(K, 16, K_WQKV, 448 * 2688)
    for r in (PR + 32, PR + 33, PR + 34, PR + 35, PR + 68, PR + 69, PR + 70, PR + 71):
        K('v_mov_b32 v%d, 0x%x' % (r, OOB))

    def mod_loads(MW, MC):
        srd(K, 20, K_WMOD, 448 * 5376)
        srd(K, 24, K_C, 896)
        K('v_lshrrev_b32 v5, 3, v0')
        K('v_and_b32 v6, 7, v0')
        K('v_mul_u32_u24 v4, 5376, v5')
        K('v_lshl_add_u32 v4, v6, 4, v4')
        K('v_lshlrev_b32 v5, 1, v5')
        K('s_lshl_b32 s34, s2, 7')
        for i in range(14):
            K('buffer_load_ushort v%d, v5, s[24:27], 0 offen offset:%d' % (MC + i, 64 * i))
        for i in range(14):
            K('buffer_load_dwordx4 v[%d:%d], v4, s[20:23], s34 offen' % (MW + 4 * i, MW + 4 * i + 3))
            if i < 13:
                K('s_add_u32 s34, s34, %d' % (32 * 5376))

    def mod_compute(MW, MC, MA, TMP, scr, secs):
        for i in range(14):
            K('v_lshlrev_b32 v%d, 16, v%d' % (MC + i, MC + i))
            K('v_mul_f32 v%d, 0x%x, v%d' % (TMP + i, LOG2E | 0x80000000, MC + i))
        for i in range(14):
            K('v_exp_f32 v%d, v%d' % (TMP + i, TMP + i))
        for i in range(14):
            K('v_add_f32 v%d, 1.0, v%d' % (TMP + i, TMP + i))
        for i in range(14):
            K('v_rcp_f32 v%d, v%d' % (TMP + i, TMP + i))
        for i in range(14):
            K('v_mul_f32 v%d, v%d, v%d' % (TMP + i, TMP + i, MC + i))
        for i in range(0, 14, 2):
            K('v_cvt_pk_bf16_f32 v%d, v%d, v%d' % (TMP + i, TMP + i, TMP + i + 1))
            unpack(K, MC + i, MC + i + 1, TMP + i)
        for i in range(14):
            for d in range(4):
                t = TMP + 2 * d
                unpack(K, t, t + 1, MW + 4 * i + d)
                if i == 0:
                    K('v_pk_mul_f32 v[%d:%d], v[%d:%d], v[%d:%d] op_sel_hi:[1,0]' % (MA + 2 * d, MA + 2 * d + 1, t, t + 1, MC, MC + 1))
                elif i % 2 == 0:
                    K('v_pk_fma_f32 v[%d:%d], v[%d:%d], v[%d:%d], v[%d:%d] op_sel_hi:[1,0,1]' % (MA + 2 * d, MA + 2 * d + 1, t, t + 1, MC + i, MC + i + 1, MA + 2 * d, MA + 2 * d + 1))
                else:
                    K('v_pk_fma_f32 v[%d:%d], v[%d:%d], v[%d:%d], v[%d:%d] op_sel:[0,1,0] op_sel_hi:[1,1,1]' % (MA + 2 * d, MA + 2 * d + 1, t, t + 1, MC + i - 1, MC + i, MA + 2 * d, MA + 2 * d + 1))
        K('v_lshlrev_b32 v4, 5, v0')
        K('v_add_u32 v4, %d, v4' % scr)
        K('ds_write_b128 v4, v[%d:%d]' % (MA, MA + 3))
        K('ds_write_b128 v4, v[%d:%d] offset:16' % (MA + 4, MA + 7))
        K.wait(lg=0)
        K('s_barrier')
        K('s_cmp_eq_u32 s3, 3')
        L2 = K.skip_begin('s_cbranch_scc0', 'w3')
        K('v_lshrrev_b32 v4, 2, v1')
        K('v_add_u32 v4, %d, v4' % scr)
        Z = TMP
        for r in range(32):
            K('ds_read_b32 v%d, v4 offset:%d' % (Z + r, 256 * r))
        I = TMP + 32
        K('s_mul_i32 s35, s2, 9363')
        K('s_lshr_b32 s35, s35, 16')
        K('s_mul_i32 s34, s35, 7')
        K('s_sub_u32 s34, s2, s34')
        K('s_lshl_b32 s34, s34, 6')
        K('v_lshrrev_b32 v%d, 4, v1' % I)
        K('v_add_u32 v%d, s34, v%d' % (I, I))
        if 0 in secs:
            K('v_lshrrev_b32 v%d, 3, v%d' % (I + 1, I))
            K('v_and_b32 v%d, 7, v%d' % (I + 2, I))
            K('v_lshl_add_u32 v%d, v%d, 4, v%d' % (I + 1, I + 1, I + 2))
            K('v_lshlrev_b32 v%d, 3, v%d' % (I + 1, I + 1))
        else:
            K('v_bfe_u32 v%d, v%d, 2, 1' % (I + 3, I))
            K('v_and_b32 v%d, 3, v%d' % (I + 4, I))
            K('v_lshl_add_u32 v%d, v%d, 4, v%d' % (I + 4, I + 3, I + 4))
            K('v_lshrrev_b32 v%d, 4, v%d' % (I + 2, I))
            K('v_lshl_add_u32 v%d, v%d, 5, v%d' % (I + 2, I + 2, I + 4))
            K('v_bfe_u32 v%d, v%d, 3, 1' % (I + 5, I))
            K('v_lshl_add_u32 v%d, v%d, 2, v%d' % (I + 2, I + 5, I + 2))
            K('v_lshlrev_b32 v%d, 2, v%d' % (I + 2, I + 2))
            K('v_lshrrev_b32 v%d, 5, v%d' % (I + 3, I))
            K('v_lshl_add_u32 v%d, v%d, 5, v%d' % (I + 3, I + 3, I + 4))
            K('v_bfe_u32 v%d, v%d, 3, 2' % (I + 5, I))
            K('v_lshl_add_u32 v%d, v%d, 2, v%d' % (I + 3, I + 5, I + 3))
            K('v_lshlrev_b32 v%d, 2, v%d' % (I + 3, I + 3))
        for st in (16, 8, 4, 2):
            for r in range(0, st, 2):
                K('v_pk_add_f32 v[%d:%d], v[%d:%d], v[%d:%d]' % (Z + r, Z + r + 1, Z + r, Z + r + 1, Z + r + st, Z + r + st + 1))
        K('v_add_f32 v%d, v%d, v%d' % (Z, Z, Z + 1))
        K('v_cvt_pk_bf16_f32 v%d, v%d, v%d' % (Z, Z, Z))
        K('v_and_b32 v%d, 0xffff0000, v%d' % (Z, Z))
        K('v_add_f32 v%d, 1.0, v%d' % (Z + 2, Z))
        K('v_cvt_pk_bf16_f32 v%d, v%d, v%d' % (Z + 2, Z + 2, Z + 2))
        K('v_and_b32 v%d, 0xffff0000, v%d' % (Z + 2, Z + 2))
        K('v_mov_b32 v%d, s%d' % (Z + 1, S_TAG))
        K('v_mov_b32 v%d, s%d' % (Z + 3, S_TAG))
        tab = [(I + 1, Z, MODG + 64, 1), (I + 1, Z + 2, MODG, 1), (I + 3, Z, GA, 0), (I + 2, Z, P2 + 32, 0), (I + 2, Z + 2, P2, 0), (I + 3, Z, GB, 0)]
        for sec in secs:
            idx, val, base, wide = tab[sec]
            K('s_cmp_eq_u32 s35, %d' % sec)
            L3 = K.skip_begin('s_cbranch_scc0')
            K('s_mov_b32 s34, 0x%x' % base)
            if wide:
                K('buffer_store_dwordx2 v[%d:%d], v%d, s[8:11], s34 offen%s' % (val, val + 1, idx, SC))
            else:
                K('buffer_store_dword v%d, v%d, s[8:11], s34 offen%s' % (val, idx, SC))
            K.skip_end(L3)
        K.skip_end(L2)

    K('s_cmp_lt_u32 s2, 14')
    L = K.skip_begin('s_cbranch_scc0', 'p1')
    mod_loads(16, 72)
    make_tag(K)
    mod_compute(16, 72, 88, 96, LX, (0, 1))
    K('s_barrier')
    K.skip_end(L)
    pf.stamp('mod')
    K('s_and_b32 s33, s%d, 1' % S_G)
    K('s_mul_i32 s33, s33, 3')
    K('s_add_u32 s33, s33, s%d' % S_M)
    K('s_mul_i32 s34, s33, 9363')
    K('s_lshr_b32 s34, s34, 16')
    K('s_mul_i32 s34, s34, 7')
    K('s_sub_u32 s39, s33, s34')
    if not ROT:
        K('s_mov_b32 s39, 0')
    K('v_lshrrev_b32 v4, 7, v1')
    K('v_mul_u32_u24 v4, 896, v4')
    K('v_lshrrev_b32 v5, 8, v1')
    K('v_and_b32 v6, 7, v0')
    K('v_xor_b32 v6, v5, v6')
    K('v_lshl_add_u32 v5, v6, 4, v4')
    K('v_xor_b32 v6, 4, v6')
    K('v_lshl_add_u32 v6, v6, 4, v4')
    K('s_mul_i32 s34, s%d, 28672' % S_TILE)
    K('s_mul_i32 s35, s3, 28672')
    K('s_lshl_b32 s33, s39, 7')
    xd = []
    for cb in range(7):
        if cb:
            K('s_add_u32 s33, s33, 128')
            K('s_cmp_eq_u32 s33, 896')
            K('s_cmov_b32 s33, 0')
        K('s_add_u32 s37, s34, s33')
        for rb in range(4):
            K('s_add_u32 m0, s35, %d' % ((rb * 7 + cb) * 1024))
            K('s_add_u32 s36, s37, %d' % (rb * 7168))
            xd.append(K('buffer_load_dwordx4 v%d, s[12:15], s36 offen lds' % (5 + (rb & 1))))
    K('v_lshrrev_b32 v4, 6, v1')
    K('v_mul_u32_u24 v4, 2688, v4')
    K('v_and_b32 v7, 0x30, v1')
    K('v_add_u32 v7, v4, v7')
    K('s_mul_i32 s37, s%d, 56' % S_M)
    K('s_and_b32 s38, s37, 8')
    K('s_and_b32 s37, s37, 0xfff0')
    QB4 = 4 * 43008

    def w_src(idx):
        return (idx // 3) * 43008 + (idx % 3) * 896

    def unit_base(dst, add):
        K('s_add_u32 s%d, s33, s39' % dst)
        if add:
            K('s_add_u32 s%d, s%d, %d' % (dst, dst, add))
        K('s_cmp_ge_u32 s%d, 7' % dst)
        K('s_cselect_b32 s36, 7, 0')
        K('s_sub_u32 s%d, s%d, s36' % (dst, dst))
        K('s_mul_i32 s%d, s%d, %d' % (dst, dst, QB4))
        K('s_add_u32 s%d, s%d, s37' % (dst, dst))
    wt_ops = []
    K('s_cmp_lt_u32 s3, 3')
    L = K.skip_begin('s_cbranch_scc0', 'w012')
    K('s_mov_b32 s33, s3')
    unit_base(35, 0)
    K('s_mul_i32 s34, s3, 12288')
    wh = []
    for i in range(12):
        K('s_add_u32 m0, s34, %d' % (LWH + 1024 * i))
        K('s_add_u32 s36, s35, %d' % w_src(i))
        wh.append(K('buffer_load_dwordx4 v7, s[16:19], s36 offen lds'))
    unit_base(35, 3)
    for i in range(12):
        K('s_add_u32 s36, s35, %d' % w_src(i))
        wt_ops.append(K('buffer_load_dwordx4 %s, v7, s[16:19], s36 offen' % ar(A_WT + 4 * i, 4)))
    K('s_mov_b32 s33, 6')
    unit_base(35, 0)
    K('s_mul_i32 s34, s3, 896')
    K('s_add_u32 s35, s35, s34')
    for i in range(4):
        K('s_add_u32 s36, s35, %d' % (i * 43008))
        wt_ops.append(K('buffer_load_dwordx4 %s, v7, s[16:19], s36 offen' % ar(A_WT + 48 + 4 * i, 4)))

    def issue_wp():
        srd(K, 20, K_WPHI, 16 * 1568)
        K('s_mul_i32 s35, s%d, 1568' % S_M)
        K('v_mul_u32_u24 v4, %d, v3' % (4 * 56))
        K('v_lshl_add_u32 v4, v2, 1, v4')
        K('v_mov_b32 v6, 0x%x' % OOB)
        K('v_cmp_gt_u32 vcc, 28, v2')
        K('v_cndmask_b32 v4, v6, v4, vcc')
        K('v_cmp_eq_u32 vcc, 0, v3')
        K('v_cndmask_b32 v5, v6, v4, vcc')
        for a in range(2):
            for j in range(8):
                K('buffer_load_ushort a%d, v%d, s[20:23], s35 offen offset:%d' % (A_WPR + 8 * a + j, 5 if (a == 1 and j >= 4) else 4, (16 * a + DORD[j]) * 56))
    K.skip_end(L)
    make_tag(K)
    pf.stamp('issued')

    def issue_prep(r):
        R = PR + 36 * r
        V = PB
        K('s_sub_u32 s33, s2, 28')
        K('s_cmp_lt_u32 s2, 14')
        K('s_cmov_b32 s33, s2')
        K('s_mul_i32 s33, s33, 3')
        K('s_add_u32 s33, s33, s3')
        if r:
            K('s_add_u32 s33, s33, 684')
        K('s_cmp_ge_u32 s33, 392')
        K('s_cselect_b32 s72, s%d, s%d' % (K_WU, K_WG))
        K('s_cselect_b32 s73, s%d, s%d' % (K_WU + 1, K_WG + 1))
        K('s_cselect_b32 s41, 256, 0')
        K('s_cselect_b32 s34, 392, 0')
        K('s_sub_u32 s34, s33, s34')
        K('s_mul_i32 s35, s34, 4682')
        K('s_lshr_b32 s35, s35, 16')
        K('s_mul_i32 s36, s35, 14')
        K('s_sub_u32 s36, s34, s36')
        K('s_mul_i32 s74, s35, %d' % (16 * 3584))
        K('s_lshl_b32 s97, s36, 8')
        K('s_add_u32 s74, s74, s97')
        K('s_add_u32 s75, s74, 64')
        K('s_add_u32 s76, s74, 128')
        K('s_add_u32 s77, s74, 192')
        K('s_movk_i32 s42, 3584')
        K('s_mov_b32 s43, 0x%x' % (448 * 3584))
        K('s_mul_i32 s%d, s35, 7168' % (44 + r))
        K('s_add_u32 s%d, s%d, 0x%x' % (44 + r, 44 + r, WGU))
        K('v_lshrrev_b32 v4, 4, v2')
        K('s_lshl_b32 s97, s36, 3')
        K('v_add_u32 v4, s97, v4')
        K('v_and_b32 v5, 0xf0, v1')
        K('v_lshl_add_u32 v5, v3, 9, v5')
        K('v_add_u32 v5, s41, v5')
        for b in range(4):
            K('v_add_u32 v6, %d, v4' % (2 * b))
            K('v_mul_u32_u24 v%d, 9363, v6' % V)
            K('v_lshrrev_b32 v%d, 16, v%d' % (V, V))
            K('v_mul_u32_u24 v%d, 189, v%d' % (V, V))
            K('v_add_u32 v%d, v%d, v6' % (V, V))
            K('v_lshl_add_u32 v%d, v%d, 10, v5' % (R + 32 + b, V))
        K('s_mov_b64 s[78:79], 0')
        if r:
            K('s_cmp_ge_u32 s33, 784')
            L1 = K.skip_begin('s_cbranch_scc0')
            K('s_cmp_ge_u32 s33, 1176')
            K('s_cselect_b32 s72, s%d, s%d' % (K_WO, K_WD))
            K('s_cselect_b32 s73, s%d, s%d' % (K_WO + 1, K_WD + 1))
            for (rg, a, b) in ((43, 448 * 896, 1792 * 896), (34, 1176, 784), (41, 28 * 896, 32 * 896), (97, 0x10000, 112 * 2048),
                               (46, WO, WD), (40, 0x8000, 2048)):
                K('s_mov_b32 s%d, 0x%x' % (rg, b))
                K('s_cmov_b32 s%d, 0x%x' % (rg, a))
            K('s_cselect_b32 s75, %d, 64' % (16 * 896))
            K('s_cselect_b32 s76, 64, %d' % (16 * 896))
            K('s_cselect_b32 s47, 11, 12')
            K('s_cselect_b32 s79, -1, 0')
            K('s_sub_u32 s34, s33, s34')
            K('s_mul_i32 s35, s34, 9363')
            K('s_lshr_b32 s35, s35, 16')
            K('s_mul_i32 s36, s35, 7')
            K('s_sub_u32 s36, s34, s36')
            K('s_mul_i32 s74, s35, s41')
            K('s_lshl_b32 s41, s36, 7')
            K('s_add_u32 s74, s74, s41')
            K('s_add_u32 s75, s75, s74')
            K('s_add_u32 s76, s76, s74')
            K('s_add_u32 s77, s74, %d' % (16 * 896 + 64))
            K('s_movk_i32 s42, 896')
            K('s_mul_i32 s97, s97, s36')
            K('s_lshl_b32 s35, s35, s47')
            K('s_add_u32 s97, s97, s35')
            K('s_add_u32 s%d, s97, s46' % (44 + r))
            K('v_mov_b32 v%d, v1' % (R + 32))
            K('v_add_u32 v%d, 1024, v1' % (R + 33))
            K('v_add_u32 v%d, s40, v1' % (R + 34))
            K('v_add_u32 v%d, s40, v%d' % (R + 35, R + 33))
            K('s_cmp_ge_u32 s33, 1288')
            K('s_cselect_b32 s43, 0, s43')
            K('s_cselect_b32 s%d, 0x%x, s%d' % (44 + r, 0x3000000, 44 + r))
            K.skip_end(L1)
        srd_dyn = 20
        K('s_mov_b32 s20, s72')
        K('s_and_b32 s21, s73, 0xffff')
        K('s_mov_b32 s22, s43')
        K('s_mov_b32 s23, 0x20000')
        K('v_lshlrev_b32 v4, 2, v3')
        K('v_mov_b32 v6, 0x%x' % OOB)
        for j in range(8):
            K('v_add_u32 v5, %d, v4' % DORD[j])
            K('v_mul_lo_u32 v5, v5, s42')
            K('v_lshl_add_u32 v%d, v2, 1, v5' % (V + j))
        for j in range(4):
            K('v_cndmask_b32 v%d, v%d, v6, s[78:79]' % (V + 8 + j, V + 4 + j))
        for i in range(4):
            for j in range(8):
                va = V + 8 + (j - 4) if (i & 1 and j >= 4) else V + j
                K('buffer_load_ushort v%d, v%d, s[20:23], s%d offen' % (R + 8 * i + j, va, 74 + i))

    def finish_prep(r):
        R = PR + 36 * r
        for i in range(4):
            for d in range(4):
                K('v_lshl_or_b32 v%d, v%d, 16, v%d' % (R + 8 * i + d, R + 8 * i + 2 * d + 1, R + 8 * i + 2 * d))
            K('buffer_store_dwordx4 %s, v%d, s[8:11], s%d offen%s' % (vr(R + 8 * i, 4), R + 32 + i, 44 + r, SC))

    K('s_mov_b32 s41, 0x3f803f80')
    K('v_lshlrev_b32 v5, 2, v3')
    K('v_sub_u32 v5, v2, v5')
    K('v_mov_b32 v9, 0x3f80')
    for i in range(8):
        c = 16 * (i >> 2) + 8 * ((i >> 1) & 1) + 2 * (i & 1)
        K('v_subrev_u32 v6, %d, v5' % c)
        K('v_cmp_gt_u32 vcc, 2, v6')
        K('v_lshlrev_b32 v6, 4, v6')
        K('v_lshlrev_b32 v6, v6, v9')
        K('v_cndmask_b32 v6, 0, v6, vcc')
        K('v_accvgpr_write_b32 a%d, v6' % (A_ID + i))
    K('v_lshrrev_b32 v4, 3, v2')
    K('v_mul_u32_u24 v4, 7168, v4')
    K('v_and_b32 v5, 7, v2')
    K('v_lshl_add_u32 v4, v5, 7, v4')
    K('s_mul_i32 s35, s3, 28672')
    K('v_add_u32 v4, s35, v4')
    K('v_bfe_u32 v5, v2, 1, 3')
    K('v_xor_b32 v5, v3, v5')
    for a in range(4):
        K('v_xor_b32 v6, %d, v5' % (2 * a))
        K('v_lshl_add_u32 v%d, v6, 4, v4' % (12 + a))
    K('s_cmp_lt_u32 s3, 3')
    L = K.skip_begin('s_cbranch_scc0', 'w012')
    K.wait(vm=28)
    K.skip_end(L)
    K('s_cmp_eq_u32 s3, 3')
    L = K.skip_begin('s_cbranch_scc0', 'w3')
    K.wait(vm=0)
    K.skip_end(L)
    K.forget(xd)
    pf.stamp('x')
    for t in range(28):
        K('ds_read_b128 %s, v%d offset:%d' % (vr(XF + 4 * t, 4), 12 + (t & 3), (t >> 2) * 1024))
    for i in range(4):
        K('v_mov_b32 v%d, 0' % (T + i))
    for d in range(112):
        K('v_dot2c_f32_bf16 v%d, s41, v%d' % (T + (d & 1), XF + d))
        K('v_dot2c_f32_bf16 v%d, v%d, v%d' % (T + 2 + (d & 1), XF + d, XF + d))
    K('v_add_f32 v%d, v%d, v%d' % (T, T, T + 1))
    K('v_add_f32 v%d, v%d, v%d' % (T + 2, T + 2, T + 3))
    rowstats(K, T, T + 2, T + 4, T + 5, RS, NM)
    K('v_mov_b32 v%d, v%d' % (RS + 1, RS))
    K('v_mov_b32 v%d, v%d' % (NM + 1, NM))
    K('v_bfe_u32 v4, v0, 2, 2')
    K('v_lshl_add_u32 v4, v3, 3, v4')
    K('v_lshlrev_b32 v4, 6, v4')
    K('v_bfe_u32 v5, v0, 4, 1')
    K('v_lshl_add_u32 v4, v5, 5, v4')
    K('v_and_b32 v5, 3, v0')
    K('v_lshl_add_u32 v4, v5, 3, v4')
    K('v_add_u32 v13, s38, v4')
    K('v_add_u32 v12, %d, v13' % LWH)
    K('s_lshl_b32 s35, s39, 9')
    K('s_add_u32 s35, s35, %d' % LP1)
    K('v_lshl_add_u32 v14, v3, 6, s35')
    K('s_mul_i32 s35, s3, 12288')
    K('v_add_u32 v15, s35, v1')
    K('s_lshl_b32 s35, s3, 10')
    K('v_add_u32 v7, s35, v1')
    pf.stamp('stats')

    def prenorm(t):
        for i in range(4):
            unpack(K, T + 2 * i, T + 2 * i + 1, XF + 4 * t + i)
        for i in range(4):
            K('v_pk_fma_f32 v[%d:%d], v[%d:%d], v[%d:%d], v[%d:%d]' % (T + 2 * i, T + 2 * i + 1, T + 2 * i, T + 2 * i + 1, RS, RS + 1, NM, NM + 1))
        for i in range(4):
            K('v_cvt_pk_bf16_f32 v%d, v%d, v%d' % (XF + 4 * t + i, T + 2 * i, T + 2 * i + 1))
    for t in range(NPRE):
        prenorm(t)
    K('s_cmp_eq_u32 s3, 3')
    L = K.skip_begin('s_cbranch_scc0', 'w3')
    G = PR
    K('s_mov_b32 s34, 0x%x' % MODG)
    K('s_mov_b32 s35, 0x%x' % (MODG + 4096))
    poll(K, ['buffer_load_dwordx4 %s, v1, s[8:11], s%d offen offset:%d%s' % (vr(G + 4 * i, 4), 34 + i // 4, 1024 * (i % 4), SC) for i in range(7)],
         [G + 2 * i + 1 for i in range(14)], 4)
    K('v_lshrrev_b32 v4, 1, v1')
    K('v_add_u32 v4, %d, v4' % LP1)
    for i in range(7):
        K('v_mov_b32 v%d, v%d' % (G + 4 * i + 1, G + 4 * i + 2))
        K('ds_write_b64 v4, %s offset:%d' % (vr(G + 4 * i, 2), 512 * i))
        K('ds_write_b64 v4, %s offset:%d' % (vr(G + 4 * i, 2), 3584 + 512 * i))
    K.skip_end(L)
    K('s_cmp_lt_u32 s3, 3')
    L = K.skip_begin('s_cbranch_scc0', 'w012')
    K.wait(vm=16)
    K.skip_end(L)
    K.forget(wh)
    pf.stamp('pre-go')
    issue_wp()
    K('s_sub_u32 s33, s2, 14')
    K('s_cmp_lt_u32 s33, 28')
    K('s_cselect_b32 s7, 2, 1')
    K('s_cmp_eq_u32 s3, 3')
    K('s_cselect_b32 s33, 1, 0')
    K('s_andn2_b32 s7, s7, s33')
    K('s_cmp_eq_u32 s7, 2')
    L = K.skip_begin('s_cbranch_scc0', 'lmod')
    K.wait(lg=0)
    mod_loads(PR, PR + 56)
    K.skip_end(L)
    K('s_cmp_eq_u32 s7, 1')
    L = K.skip_begin('s_cbranch_scc0', 'prep')
    issue_prep(0)
    issue_prep(1)
    K.skip_end(L)
    K('s_mov_b32 s40, 0x%x' % LOG2E)
    K('s_mov_b32 s41, 0x3f803f80')
    K('v_cmp_eq_u32 s[42:43], 1, v3')
    K('v_cmp_eq_u32 s[46:47], 28, v2')
    K('v_cmp_lt_u32 s[72:73], 28, v2')
    K.wait(lg=0)
    K('s_barrier')
    pf.stamp('go')

    def rd_a(t, parts, base):
        o = []
        for n, p in enumerate(parts):
            b = base + 4 * n
            reg, off = (12, (3 * t + p) * 1024) if t < NH else (13, LWT + (3 * (t - NH) + p) * 1024)
            o.append('ds_read_b64_tr_b16 %s, v%d offset:%d' % (ar(b, 2), reg, off))
            o.append('ds_read_b64_tr_b16 %s, v%d offset:%d' % (ar(b + 2, 2), reg, off + 256))
        return o

    def rd_p(t):
        return ['ds_read_b128 v[%d:%d], v14 offset:%d' % (PB + 4 * i, PB + 4 * i + 3, 128 * t + 16 * i) for i in range(4)]

    def mk_h(t):
        o = []
        for i in range(4):
            x = XF + 4 * t + i
            o += ['v_lshlrev_b32 v%d, 16, v%d' % (T + 2 * i, x), 'v_and_b32 v%d, 0xffff0000, v%d' % (T + 2 * i + 1, x)]
        if t >= NPRE:
            o += ['v_fma_f32 v%d, v%d, v%d, v%d' % (T + i, T + i, RS, NM) for i in range(8)]
        o += ['W']
        o += ['v_fmac_f32 v%d, v%d, v%d' % (PB + 8 + i, T + i, PB + i) for i in range(8)]
        o += ['v_cvt_pk_bf16_f32 v%d, v%d, v%d' % (XF + 4 * t + i, PB + 8 + 2 * i, PB + 9 + 2 * i) for i in range(4)]
        return o
    for s in rd_p(0) + rd_a(0, (1, 2), A_AB) + mk_h(0) + rd_p(1):
        if s != 'W':
            K(s)
    for t in range(28):
        if t == 2:
            K('s_cmp_eq_u32 s7, 2')
            L = K.skip_begin('s_cbranch_scc0', 'lmod')
            K.wait(vm=44)
            K.skip_end(L)
            K.forget(wt_ops)
        if t == NH - 2:
            K.wait(lg=0)
            K('s_barrier')
        b = A_AB + 8 * (t & 1)
        h = vr(XF + 4 * t, 4)
        mf = ['%s %s, %s, %s, %s' % (MF, vr(AK, 16), ar(b, 4), h, '0' if t == 0 else vr(AK, 16)),
              '%s %s, %s, %s, %s' % (MF, vr(AV, 16), h, ar(b + 4, 4), '0' if t == 0 else vr(AV, 16))]
        fill = []
        nw = 0
        K.wait(lg=4 if t + 1 < 28 else 0)
        if 2 <= t < 10:
            K('s_cmp_lt_u32 s3, 3')
            L = K.skip_begin('s_cbranch_scc0', 'w012')
            for i in (2 * t - 4, 2 * t - 3):
                if i < 12:
                    K('ds_write_b128 v15, %s offset:%d' % (ar(A_WT + 4 * i, 4), LWT + 1024 * i))
                else:
                    K('ds_write_b128 v7, %s offset:%d' % (ar(A_WT + 4 * i, 4), LWT + 36864 + 3072 * (i - 12)))
            K.skip_end(L)
        if t + 1 < 28:
            fill += rd_a(t + 1, (1, 2), A_AB + 8 * ((t + 1) & 1))
            fill += [('s_waitcnt lgkmcnt(%d)' % (4 + nw) if s == 'W' else s) for s in mk_h(t + 1)]
        if t + 2 < 28:
            fill += rd_p(t + 2)
        weave(K, mf, fill)
    pf.stamp('kv gemm')
    KB, VB, PK, FK, TT = 176, 184, 160, 192, 208
    K.wait(vm=0)
    for d in range(8):
        K('v_accvgpr_read_b32 v4, a%d' % (A_WPR + 2 * d))
        K('v_accvgpr_read_b32 v5, a%d' % (A_WPR + 1 + 2 * d))
        K('v_lshl_or_b32 v4, v5, 16, v4')
        K('v_accvgpr_write_b32 a%d, v4' % (A_WP + d))
    cvt16(K, KB, AK)
    for i in (6, 7):
        K('v_cndmask_b32 v%d, v%d, 0, s[42:43]' % (KB + i, KB + i))
    K('%s %s, %s, %s, 0' % (MF, vr(PK, 16), ar(A_WP, 4), vr(KB, 4)))
    K('%s %s, %s, %s, %s' % (MF, vr(PK, 16), ar(A_WP + 4, 4), vr(KB + 4, 4), vr(PK, 16)))
    K('s_cmp_eq_u32 s7, 1')
    L = K.skip_begin('s_cbranch_scc0', 'prep')
    finish_prep(0)
    finish_prep(1)
    K.skip_end(L)
    K('s_cmp_eq_u32 s7, 2')
    L = K.skip_begin('s_cbranch_scc0', 'lmod')
    for i in range(70):
        K('v_accvgpr_write_b32 a%d, v%d' % (128 + i, PR + i))
    K.skip_end(L)
    cvt16(K, VB, AV)
    K('v_mov_b32 v6, s41')
    for i in range(8):
        K('v_cndmask_b32 v%d, v%d, v6, s[46:47]' % (VB + i, VB + i))
        K('v_cndmask_b32 v%d, v%d, 0, s[72:73]' % (VB + i, VB + i))
    softmax_pair(K, PK, TT, FK, FK + 8, 42)
    TP, TN = AK, AV
    for (d, src) in ((TP, FK), (TN, FK + 8)):
        K('%s %s, %s, %s, 0' % (MF, vr(d, 16), vr(src, 4), ar(A_ID, 4)))
    for (d, src) in ((TP, FK), (TN, FK + 8)):
        K('%s %s, %s, %s, %s' % (MF, vr(d, 16), vr(src + 4, 4), ar(A_ID + 4, 4), vr(d, 16)))
    for s in rd_a(0, (0,), A_AB) + rd_a(1, (0,), A_AB + 4):
        K(s)
    cvt16(K, FK, TP)
    cvt16(K, FK + 8, TN)
    KP, KN = TT, TT + 16
    for (d, src) in ((KP, FK), (KN, FK + 8)):
        K('%s %s, %s, %s, 0' % (MF, vr(d, 16), vr(src, 4), vr(VB, 4)))
    for (d, src) in ((KP, FK), (KN, FK + 8)):
        K('%s %s, %s, %s, %s' % (MF, vr(d, 16), vr(src + 4, 4), vr(VB + 4, 4), vr(d, 16)))
    K('s_lshl_b32 s35, s3, 13')
    K('s_add_u32 s35, s35, %d' % LKV)
    K('v_lshl_add_u32 v6, v1, 1, s35')
    for s, d in enumerate((KP, KN)):
        for q in range(4):
            K('ds_write_b128 v6, %s offset:%d' % (vr(d + 4 * q, 4), (2 * s + (q >> 1)) * 2048 + 16 * (q & 1)))
    K.wait(lg=0)
    K('s_barrier')
    K('s_lshl_b32 s35, s3, 11')
    K('v_add_u32 v6, s35, v1')
    R = 160
    K('v_add_u32 v5, %d, v6' % LKV)
    for i in range(2):
        for w in range(4):
            K('ds_read_b128 %s, v5 offset:%d' % (vr(R + 16 * i + 4 * w, 4), 8192 * w + 1024 * i))
    K('s_lshl_b32 s36, s%d, 4' % S_M)
    K('s_add_u32 s36, s36, s%d' % S_G)
    K('s_lshl_b32 s36, s36, 13')
    K('s_add_u32 s36, s36, 0x%x' % KVP)
    for i in range(2):
        b = R + 16 * i
        for (x, y) in ((0, 4), (8, 12), (0, 8)):
            for c in (0, 2):
                K('v_pk_add_f32 v[%d:%d], v[%d:%d], v[%d:%d]' % (b + x + c, b + x + c + 1, b + x + c, b + x + c + 1, b + y + c, b + y + c + 1))
        K('buffer_store_dwordx4 %s, v6, s[8:11], s36 offen offset:%d%s' % (vr(b, 4), 1024 * i, SC))
    pf.stamp('kv out')

    def q_part():
        AQ, QB, PQ, FQ = AK, KB, PK, FK
        for t in range(28):
            K('%s %s, %s, %s, %s' % (MF, vr(AQ, 16), ar(A_AB + 4 * (t % 3), 4), vr(XF + 4 * t, 4), '0' if t == 0 else vr(AQ, 16)))
            if t + 2 < 28:
                for s in rd_a(t + 2, (0,), A_AB + 4 * ((t + 2) % 3)):
                    K(s)
        cvt16(K, QB, AQ)
        for i in (6, 7):
            K('v_cndmask_b32 v%d, v%d, 0, s[42:43]' % (QB + i, QB + i))
        K('%s %s, %s, %s, 0' % (MF, vr(PQ, 16), ar(A_WP, 4), vr(QB, 4)))
        K('%s %s, %s, %s, %s' % (MF, vr(PQ, 16), ar(A_WP + 4, 4), vr(QB + 4, 4), vr(PQ, 16)))
        softmax_pair(K, PQ, TT, FQ, FQ + 8, 42)
        K('s_lshl_b32 s36, s%d, 4' % S_TILE)
        K('s_add_u32 s36, s36, s%d' % S_M)
        K('s_lshl_b32 s36, s36, 12')
        K('s_add_u32 s36, s36, 0x%x' % PHIQ)
        for i in range(4):
            K('buffer_store_dwordx4 %s, v1, s[8:11], s36 offen offset:%d%s' % (vr(FQ + 4 * i, 4), 1024 * i, SC))
    q_part()
    pf.stamp('q out')
    K('s_cmp_eq_u32 s7, 2')
    L = K.skip_begin('s_cbranch_scc0', 'lmod')
    for i in range(70):
        K('v_accvgpr_read_b32 v%d, a%d' % (16 + i, 128 + i))
    mod_compute(16, 72, 88, 96, LKV + 32768, (2, 3, 4, 5))
    K.skip_end(L)
    if not last:
        K.wait(vm=0)
        K('s_barrier')
        K('s_cmp_eq_u32 s3, 3')
        L = K.skip_begin('s_cbranch_scc0', 'w3')
        flag_all(K, FA, 4)
        wait_all(K, FA, 4)
        K.skip_end(L)
        K('s_barrier')
        pf.stamp('barA')


def phase_b(K, pf, first, last):
    if first:
        make_tag(K)
    LO = 114688
    A_KV, A_PH, A_WO = 0, 64, 128
    XR, GR, ACC, T, OB = 16, 24, 40, 104, 112
    K('s_lshr_b32 s35, s%d, 2' % S_M)
    K('s_lshl_b32 s36, s%d, 2' % S_G)
    K('s_add_u32 s35, s35, s36')
    K('s_and_b32 s36, s%d, 3' % S_M)
    K('s_lshl_b32 s44, s36, 2')
    K('s_cmp_eq_u32 s36, 3')
    K('s_cselect_b32 s45, 1, 0')
    K('s_sub_u32 s44, s44, s45')
    K('s_add_u32 s44, s44, s3')
    K('s_lshr_b32 s45, s36, 1')
    K('s_add_u32 s45, s45, s3')

    def early_loads():
        K('s_lshl_b32 s39, s35, 16')
        K('s_lshl_b32 s40, s3, 14')
        K('s_add_u32 s39, s39, s40')
        K('s_add_u32 s39, s39, 0x%x' % PHIQ)
        load_frags(K, A_PH, 16, 39, 41, 'a')
        K('s_cmp_lt_u32 s45, 4')
        L = K.skip_begin('s_cbranch_scc0', 'hasmt')
        K('s_lshl_b32 s38, s44, 15')
        K('s_add_u32 s38, s38, 0x%x' % WO)
        load_frags(K, A_WO, 32, 38, 41, 'a')
        K('v_mul_u32_u24 v4, 896, v2')
        K('v_lshl_add_u32 v4, v3, 3, v4')
        K('s_mul_i32 s38, s35, 28672')
        K('s_lshl_b32 s39, s44, 6')
        K('s_add_u32 s38, s38, s39')
        for q in range(4):
            K('buffer_load_dwordx2 %s, v4, s[12:15], s38 offen offset:%d' % (vr(XR + 2 * q, 2), 16 * q))
        K('v_lshlrev_b32 v5, 6, v3')
        K('s_lshl_b32 s38, s44, 7')
        K('s_add_u32 s38, s38, 0x%x' % GA)
        for q in range(4):
            K('buffer_load_dwordx4 %s, v5, s[8:11], s38 offen offset:%d%s' % (vr(GR + 4 * q, 4), 16 * q, SC))
        K.skip_end(L)
    K('s_cmp_lt_u32 s3, 3')
    L = K.skip_begin('s_cbranch_scc0', 'w012')
    early_loads()
    K.skip_end(L)
    K('s_cmp_eq_u32 s3, 3')
    L = K.skip_begin('s_cbranch_scc0', 'w3')
    K('v_lshlrev_b32 v4, 4, v2')
    K('v_lshl_add_u32 v4, v3, 13, v4')
    K('s_lshl_b32 s38, s%d, 17' % S_M)
    K('s_lshl_b32 s39, s%d, 9' % S_G)
    K('s_add_u32 s38, s38, s39')
    K('s_add_u32 s38, s38, 0x%x' % KVP)
    for i in range(8):
        K('buffer_load_dwordx4 %s, v4, s[8:11], s38 offen%s' % (vr(OB + 4 * i, 4), SC))
        if i < 7:
            K('s_add_u32 s38, s38, 16384')
    for st in (16, 8, 4):
        for r in range(0, st, 2):
            K('v_pk_add_f32 v[%d:%d], v[%d:%d], v[%d:%d]' % (OB + r, OB + r + 1, OB + r, OB + r + 1, OB + r + st, OB + r + st + 1))
    for i in range(4):
        K('v_mov_b32 v%d, v%d' % (OB + 4 + i, OB + i))
    for i in range(4):
        K('v_permlane32_swap_b32 v%d, v%d' % (OB + i, OB + 4 + i))
    for r in (0, 2):
        K('v_pk_add_f32 v[%d:%d], v[%d:%d], v[%d:%d]' % (OB + r, OB + r + 1, OB + r, OB + r + 1, OB + r + 4, OB + r + 5))
    K('v_cvt_pk_bf16_f32 v%d, v%d, v%d' % (OB, OB, OB + 1))
    K('v_cvt_pk_bf16_f32 v%d, v%d, v%d' % (OB + 1, OB + 2, OB + 3))
    K('v_lshlrev_b32 v4, 3, v2')
    K('s_lshl_b32 s38, s%d, 12' % S_M)
    K('s_lshl_b32 s39, s%d, 8' % S_G)
    K('s_add_u32 s38, s38, s39')
    K('s_add_u32 s38, s38, 0x%x' % KVB)
    K('s_mov_b64 exec, 0xffffffff')
    K('buffer_store_dwordx2 %s, v4, s[8:11], s38 offen%s' % (vr(OB, 2), SC))
    K('s_mov_b64 exec, -1')
    K.wait(vm=0)
    flag_all(K, FB, 4)
    early_loads()
    wait_all(K, FB, 8)
    K.skip_end(L)
    K('s_barrier')
    pf.stamp('barB')
    K('s_lshl_b32 s38, s3, 14')
    K('s_add_u32 s38, s38, 0x%x' % KVB)
    load_frags(K, A_KV, 16, 38, 41, 'a')
    K('s_lshl_b32 s38, s3, 13')
    K('s_add_u32 s38, s38, %d' % LO)
    K('v_add_u32 v6, s38, v1')
    for hh in range(4):
        a = ACC + 16 * hh
        for i in range(4):
            K('%s %s, %s, %s, %s' % (MF, vr(a, 16), ar(A_KV + 16 * hh + 4 * i, 4), ar(A_PH + 16 * hh + 4 * i, 4), '0' if i == 0 else vr(a, 16)))
    for hh in range(4):
        a = ACC + 16 * hh
        t = T + 2 * hh
        K('v_mov_b32 v%d, v%d' % (t, a + 12))
        K('v_permlane32_swap_b32 v%d, v%d' % (a + 12, t))
        K('v_add_f32 v%d, 0x%x, v%d' % (t, 0x358637bd, t))
        K('v_rcp_f32 v%d, v%d' % (t, t))
        K('v_mov_b32 v%d, v%d' % (t + 1, t))
        o = OB + 8 * hh
        for i in range(8):
            K('v_pk_mul_f32 v[%d:%d], v[%d:%d], v[%d:%d]' % (a + 2 * i, a + 2 * i + 1, a + 2 * i, a + 2 * i + 1, t, t + 1))
            K('v_cvt_pk_bf16_f32 v%d, v%d, v%d' % (o + i, a + 2 * i, a + 2 * i + 1))
        K('ds_write_b128 v6, %s offset:%d' % (vr(o, 4), 2048 * hh))
        K('ds_write_b128 v6, %s offset:%d' % (vr(o + 4, 4), 2048 * hh + 1024))
    K.wait(lg=0)
    K('s_barrier')
    pf.stamp('o')
    K('s_cmp_lt_u32 s45, 4')
    L = K.skip_begin('s_cbranch_scc0', 'hasmt')
    K('v_add_u32 v6, %d, v1' % LO)
    for i in range(32):
        K('ds_read_b128 %s, v6 offset:%d' % (vr(OB + 4 * i, 4), 1024 * i))
    for i in range(32):
        a = ACC + 16 * (i & 1)
        K('%s %s, %s, %s, %s' % (MF, vr(a, 16), ar(A_WO + 4 * i, 4), vr(OB + 4 * i, 4), '0' if i < 2 else vr(a, 16)))
    U = 72
    for i in range(8):
        unpack(K, U + 2 * i, U + 2 * i + 1, XR + i)
    K('s_mul_i32 s38, s35, 28672')
    K('s_lshl_b32 s39, s44, 11')
    K('s_add_u32 s38, s38, s39')
    K('s_add_u32 s38, s38, 0x%x' % X1)
    K('s_mul_i32 s40, s35, 7168')
    K('s_lshr_b32 s39, s44, 1')
    K('s_lshl_b32 s39, s39, 10')
    K('s_add_u32 s40, s40, s39')
    K('s_and_b32 s39, s44, 1')
    K('s_lshl_b32 s39, s39, 3')
    K('s_add_u32 s40, s40, s39')
    K('s_add_u32 s40, s40, 0x%x' % STATS)
    for i in range(8):
        K('v_pk_add_f32 v[%d:%d], v[%d:%d], v[%d:%d]' % (ACC + 2 * i, ACC + 2 * i + 1, ACC + 2 * i, ACC + 2 * i + 1, ACC + 16 + 2 * i, ACC + 17 + 2 * i))
        K('v_pk_fma_f32 v[%d:%d], v[%d:%d], v[%d:%d], v[%d:%d]' % (U + 2 * i, U + 2 * i + 1, ACC + 2 * i, ACC + 2 * i + 1, GR + 2 * i, GR + 2 * i + 1, U + 2 * i, U + 2 * i + 1))
    O = 88
    cvt16(K, O, U)
    K('buffer_store_dwordx4 %s, v1, s[8:11], s38 offen%s' % (vr(O, 4), SC))
    K('buffer_store_dwordx4 %s, v1, s[8:11], s38 offen offset:1024%s' % (vr(O + 4, 4), SC))
    K('s_mov_b32 s41, 0x3f803f80')
    K('v_mov_b32 v%d, 0' % T)
    K('v_mov_b32 v%d, 0' % (T + 1))
    for i in range(8):
        K('v_dot2c_f32_bf16 v%d, s41, v%d' % (T, O + i))
        K('v_dot2c_f32_bf16 v%d, v%d, v%d' % (T + 1, O + i, O + i))
    K('buffer_store_dwordx2 %s, v1, s[8:11], s40 offen%s' % (vr(T, 2), SC))
    if not last:
        K.wait(vm=0)
        K('s_lshl_b32 s38, s35, 4')
        K('s_add_u32 s38, s38, s44')
        K('s_lshl_b32 s38, s38, 4')
        K('s_add_u32 s38, s38, 0x%x' % FX)
        K('v_mov_b32 v4, s%d' % S_TAG)
        K('v_mov_b32 v5, 0')
        K('s_mov_b64 exec, 1')
        K('buffer_store_dword v4, v5, s[8:11], s38 offen%s' % SC)
        K('s_mov_b64 exec, -1')
    K.skip_end(L)
    pf.stamp('x1 out')


def phase_c(K, pf, first, last):
    CH = 28672
    LP = 5 * CH
    XF, ACC, PB, T = 8, 120, 232, 248
    ST = ACC
    RS, NM = 0, 7
    if first and not last:
        make_tag(K)
    if not first:
        K('s_barrier')
    K('s_lshl_b32 s38, s3, 10')
    K('s_add_u32 m0, s38, %d' % LP)
    K('s_add_u32 s38, s38, 0x%x' % P2)
    K('buffer_load_dwordx4 v1, s[8:11], s38 offen%s lds' % SC)
    K('s_mul_i32 s42, s3, 7168')
    K('s_mul_i32 s43, s%d, %d' % (S_M, 196 * 1024))
    K('s_add_u32 s43, s43, s42')
    K('s_add_u32 s43, s43, 0x%x' % WGU)
    K('s_mul_i32 s44, s%d, 28672' % S_TILE)
    K('s_add_u32 s44, s44, 0x%x' % X1)
    dm = {}

    def chunk(c):
        K('s_add_u32 s45, s43, %d' % (c * CH))
        K('s_add_u32 s46, s42, %d' % ((c % 5) * CH))
        dm[c] = dma_frags(K, 7, 45, 46, 41)

    def stats_loads():
        K('s_mul_i32 s38, s%d, 7168' % S_TILE)
        K('s_add_u32 s38, s38, 0x%x' % STATS)
        load_frags(K, ST, 7, 38, 41)
    if first:
        stats_loads()
        for c in range(5):
            chunk(c)
            n = 4 if c < 4 else 12
            K('s_add_u32 s45, s44, %d' % (4096 * c))
            load_frags(K, XF + 16 * c, n, 45, 41)
    else:
        for c in range(5):
            chunk(c)
        K('s_lshl_b32 s38, s%d, 8' % S_TILE)
        K('s_add_u32 s38, s38, 0x%x' % FX)
        K('v_min_u32 v4, 208, v1')
        poll(K, ['buffer_load_dword v5, v4, s[8:11], s38 offen%s' % SC], [5], 6)
        pf.stamp('x1 in')
        stats_loads()
        load_frags(K, XF, 28, 44, 41)
    K('v_lshlrev_b32 v4, 6, v3')
    K('v_add_u32 v4, %d, v4' % LP)
    K('v_add_u32 v5, 0x10000, v1')
    K('v_add_u32 v6, 0x20000, v1')
    for i in range(1, 7):
        K('v_pk_add_f32 v[%d:%d], v[%d:%d], v[%d:%d]' % (ST, ST + 1, ST, ST + 1, ST + 4 * i, ST + 4 * i + 1))
        K('v_pk_add_f32 v[%d:%d], v[%d:%d], v[%d:%d]' % (ST + 2, ST + 3, ST + 2, ST + 3, ST + 4 * i + 2, ST + 4 * i + 3))
    K('v_pk_add_f32 v[%d:%d], v[%d:%d], v[%d:%d]' % (ST, ST + 1, ST, ST + 1, ST + 2, ST + 3))
    rowstats(K, ST, ST + 1, ST + 2, ST + 3, RS, NM)

    def rd_a(t):
        b = 28 * (t & 1)
        o = []
        for m in range(7):
            off = ((t // 4) % 5) * CH + ((t % 4) * 7 + m) * 1024
            base = (1, 5, 6)[off >> 16]
            o.append('ds_read_b128 a[%d:%d], v%d offset:%d' % (b + 4 * m, b + 4 * m + 3, base, off & 0xffff))
        return o

    def rd_p(t):
        return ['ds_read_b128 v[%d:%d], v4 offset:%d' % (PB + 4 * i, PB + 4 * i + 3, 128 * t + 16 * i) for i in range(4)]

    def mk_h(t):
        o = []
        for i in range(4):
            x = XF + 4 * t + i
            o += ['v_lshlrev_b32 v%d, 16, v%d' % (T + 2 * i, x), 'v_and_b32 v%d, 0xffff0000, v%d' % (T + 2 * i + 1, x)]
        o += ['v_fma_f32 v%d, v%d, v%d, v%d' % (T + i, T + i, RS, NM) for i in range(8)]
        o += ['v_fmac_f32 v%d, v%d, v%d' % (PB + 8 + i, T + i, PB + i) for i in range(8)]
        o += ['v_cvt_pk_bf16_f32 v%d, v%d, v%d' % (XF + 4 * t + i, PB + 8 + 2 * i, PB + 9 + 2 * i) for i in range(4)]
        return o
    K.wait_for(dm[0][-1])
    K('s_barrier')
    pf.stamp('c go')
    for s in rd_p(0) + rd_a(0) + mk_h(0) + rd_p(1):
        K(s)
    for t in range(28):
        if (t + 1) % 4 == 0 and t + 1 < 28:
            c = (t + 1) // 4
            K.wait_for(dm[c][-1])
            K('s_barrier')
            if c in (2, 3):
                chunk(c + 3)
        b = 28 * (t & 1)
        h = vr(XF + 4 * t, 4)
        mf = ['%s %s, %s, %s, %s' % (MF, vr(ACC + 16 * m, 16), ar(b + 4 * m, 4), h, '0' if t == 0 else vr(ACC + 16 * m, 16)) for m in range(7)]
        fill = []
        if t + 1 < 28:
            ra, mh = rd_a(t + 1), mk_h(t + 1)
            for i in range(7):
                fill += [ra[i], mh[i]]
            fill += mh[7:16] + ['s_waitcnt lgkmcnt(7)'] + mh[16:]
        K.wait(lg=4 if t + 1 < 28 else 0)
        if t + 2 < 28:
            fill += rd_p(t + 2)
        weave(K, mf, fill)
    pf.stamp('c gemm')
    K('s_mul_i32 s38, s%d, %d' % (S_TILE, 112 * 1024))
    K('s_mul_i32 s39, s%d, 7168' % S_M)
    K('s_add_u32 s38, s38, s39')
    K('s_add_u32 s38, s38, 0x%x' % HH)
    K('s_add_u32 s39, s38, 4096')
    for m in range(7):
        g = ACC + 16 * m
        for i in range(4):
            K('v_pk_mul_f32 v[%d:%d], v[%d:%d], v[%d:%d]' % (g + 2 * i, g + 2 * i + 1, g + 2 * i, g + 2 * i + 1, g + 8 + 2 * i, g + 9 + 2 * i))
        for i in range(4):
            K('v_cvt_pk_bf16_f32 v%d, v%d, v%d' % (g + 8 + i, g + 2 * i, g + 2 * i + 1))
        K('buffer_store_dwordx4 %s, v1, s[8:11], s%d offen offset:%d%s' % (vr(g + 8, 4), 38 + m // 4, 1024 * (m % 4), SC))
    if not last:
        K.wait(vm=0)
        K('s_lshl_b32 s38, s%d, 4' % S_TILE)
        K('s_add_u32 s38, s38, s%d' % S_M)
        K('s_lshl_b32 s38, s38, 4')
        K('s_add_u32 s38, s38, 0x%x' % FH)
        K('v_mov_b32 v4, s%d' % S_TAG)
        K('v_mov_b32 v5, 0')
        K('s_mov_b64 exec, 1')
        K('buffer_store_dword v4, v5, s[8:11], s38 offen%s' % SC)
        K('s_mov_b64 exec, -1')
    pf.stamp('hh out')


def phase_d(K, pf, first):
    if first:
        make_tag(K)
    K('s_cmp_eq_u32 s2, 0')
    L = K.skip_begin('s_cbranch_scc0')
    K('v_mov_b32 v4, s%d' % S_TAG)
    K('v_mov_b32 v5, 0')
    K('s_mov_b64 exec, 1')
    K('buffer_store_dword v4, v5, s[8:11], 0 offen offset:%d' % EPOCH)
    K('s_mov_b64 exec, -1')
    K.skip_end(L)
    K('s_cmp_lt_u32 s%d, 14' % S_M)
    Lall = K.skip_begin('s_cbranch_scc0')
    srd(K, 24, K_OUT, 2048 * 896)
    K('s_cmp_ge_u32 s%d, 7' % S_M)
    K('s_cselect_b32 s35, 1, 0')
    K('s_cselect_b32 s36, 7, 0')
    K('s_sub_u32 s36, s%d, s36' % S_M)
    K('s_lshl_b32 s37, s%d, 1' % S_G)
    K('s_add_u32 s35, s35, s37')
    RING, DEP = 16, 14
    XR = 240
    K('s_mul_i32 s38, s36, %d' % (112 * 2048))
    K('s_mul_i32 s39, s3, %d' % (28 * 2048))
    K('s_add_u32 s38, s38, s39')
    K('s_add_u32 s38, s38, 0x%x' % WD)
    K('s_mul_i32 s39, s35, %d' % (2 * 112 * 1024))
    K('s_mul_i32 s40, s3, %d' % (28 * 1024))
    K('s_add_u32 s39, s39, s40')
    K('s_add_u32 s39, s39, 0x%x' % HH)
    K('s_add_u32 s40, s39, %d' % (112 * 1024))
    if not first:
        K('s_lshl_b32 s46, s35, 9')
        K('s_lshl_b32 s47, s3, 6')
        K('s_add_u32 s46, s46, s47')
        K('s_add_u32 s46, s46, 0x%x' % FH)
        K('v_and_b32 v4, 0x30, v1')
        K('v_and_b32 v5, 0x40, v1')
        K('v_lshl_add_u32 v4, v5, 2, v4')
        poll(K, ['buffer_load_dword v5, v4, s[8:11], s46 offen%s' % SC], [5], 6)
        pf.stamp('hh in')

    def loads(t):
        b = RING + 16 * (t % DEP)
        o = []
        if t % 2 == 0 and t:
            o.append('s_add_u32 s38, s38, 4096')
        if t % 4 == 0 and t:
            o.append('s_add_u32 s39, s39, 4096')
            o.append('s_add_u32 s40, s40, 4096')
        o.append('buffer_load_dwordx4 %s, v1, s[8:11], s38 offen offset:%d%s' % (vr(b, 4), 2048 * (t % 2), SC))
        o.append('buffer_load_dwordx4 %s, v1, s[8:11], s39 offen offset:%d%s' % (vr(b + 8, 4), 1024 * (t % 4), SC))
        o.append('buffer_load_dwordx4 %s, v1, s[8:11], s38 offen offset:%d%s' % (vr(b + 4, 4), 2048 * (t % 2) + 1024, SC))
        o.append('buffer_load_dwordx4 %s, v1, s[8:11], s40 offen offset:%d%s' % (vr(b + 12, 4), 1024 * (t % 4), SC))
        return o
    for t in range(DEP):
        for s in loads(t):
            K(s)
    K('s_and_b32 s42, s3, 1')
    K('s_lshr_b32 s43, s3, 1')
    K('s_lshl_b32 s44, s36, 1')
    K('s_add_u32 s44, s44, s42')
    K('s_lshl_b32 s45, s35, 1')
    K('s_add_u32 s45, s45, s43')
    K('v_and_b32 v2, 0x1f0, v1')
    K('v_lshrrev_b32 v3, 9, v1')
    K('v_lshlrev_b32 v5, 6, v3')
    K('v_mul_u32_u24 v4, 56, v2')
    K('v_lshl_add_u32 v4, v3, 4, v4')
    for t in range(28):
        b = RING + 16 * (t % DEP)
        for ni in range(2):
            for mi in range(2):
                a = ar(16 * (2 * ni + mi), 16)
                K('%s %s, %s, %s, %s' % (MF, a, vr(b + 4 * mi, 4), vr(b + 8 + 4 * ni, 4), '0' if t == 0 else a))
        if t == 0:
            pf.stamp('d first')
        if t + DEP < 28:
            for s in loads(t + DEP):
                K(s)
        if t == 14:
            K('s_mul_i32 s46, s45, 28672')
            K('s_lshl_b32 s47, s44, 11')
            K('s_add_u32 s46, s46, s47')
            K('s_add_u32 s46, s46, 0x%x' % X1)
            load_frags(K, XR, 2, 46, 41)
            K('s_lshl_b32 s46, s44, 7')
            K('s_add_u32 s46, s46, 0x%x' % GB)
            for q in range(4):
                K('buffer_load_dwordx4 %s, v5, s[8:11], s46 offen offset:%d%s' % (ar(64 + 4 * q, 4), 16 * q, SC))
    pf.stamp('d gemm')
    if not first:
        K('s_barrier')
    K('s_lshl_b32 s46, s3, 14')
    K('v_add_u32 v6, s46, v1')
    for tl in range(4):
        K('s_cmp_lg_u32 s3, %d' % tl)
        L = K.skip_begin('s_cbranch_scc0')
        for q in range(4):
            K('ds_write_b128 v6, %s offset:%d' % (ar(16 * tl + 4 * q, 4), 4096 * tl + 1024 * q))
        K.skip_end(L)
    for tl in range(4):
        K('s_cmp_eq_u32 s3, %d' % tl)
        L = K.skip_begin('s_cbranch_scc0')
        for i in range(16):
            K('v_accvgpr_read_b32 v%d, a%d' % (16 + i, 16 * tl + i))
        K.skip_end(L)
    K.wait(lg=0)
    K('s_barrier')
    K('s_lshl_b32 s46, s3, 12')
    K('v_add_u32 v6, s46, v1')
    for k in range(1, 4):
        K('s_add_u32 s46, s3, %d' % k)
        K('s_and_b32 s46, s46, 3')
        K('s_lshl_b32 s46, s46, 14')
        K('v_add_u32 v7, s46, v6')
        for q in range(4):
            K('ds_read_b128 %s, v7 offset:%d' % (vr(16 + 16 * k + 4 * q, 4), 1024 * q))
    U, G = 96, 112
    for i in range(8):
        unpack(K, U + 2 * i, U + 2 * i + 1, XR + i)
    for i in range(16):
        K('v_accvgpr_read_b32 v%d, a%d' % (G + i, 64 + i))
    for k in range(1, 4):
        for i in range(8):
            K('v_pk_add_f32 v[%d:%d], v[%d:%d], v[%d:%d]' % (16 + 2 * i, 17 + 2 * i, 16 + 2 * i, 17 + 2 * i, 16 + 16 * k + 2 * i, 17 + 16 * k + 2 * i))
    for i in range(8):
        K('v_pk_fma_f32 v[%d:%d], v[%d:%d], v[%d:%d], v[%d:%d]' % (U + 2 * i, U + 2 * i + 1, 16 + 2 * i, 17 + 2 * i, G + 2 * i, G + 2 * i + 1, U + 2 * i, U + 2 * i + 1))
    O = 80
    cvt16(K, O, U)
    for b in (0, 4):
        K('v_permlane32_swap_b32 v%d, v%d' % (O + b, O + b + 2))
        K('v_permlane32_swap_b32 v%d, v%d' % (O + b + 1, O + b + 3))
    K('s_mul_i32 s46, s45, 28672')
    K('s_lshl_b32 s47, s44, 6')
    K('s_add_u32 s46, s46, s47')
    K('buffer_store_dwordx4 %s, v4, s[24:27], s46 offen' % vr(O, 4))
    K('buffer_store_dwordx4 %s, v4, s[24:27], s46 offen offset:32' % vr(O + 4, 4))
    K.skip_end(Lall)


def main():
    Kern.excl = [{'prep', 'lmod'}, {'w3', 'w012'}, {'w3', 'prep'}]
    groups = {0: ['a', 'b', 'c', 'd'], 1: ['ab', 'c', 'd'], 2: ['abc', 'd'], 3: ['abcd']}[FUSE]
    ks = []
    for kid, gname in enumerate(groups):
        name = NAME + '_kernel' if len(groups) == 1 else 'phase_%s_kernel' % gname
        K = Kern(name)
        pf = Prof(K, kid)
        f_end = head(K, pf)
        for i, ph in enumerate(gname):
            first, last = i == 0, i == len(gname) - 1
            K.c('================ phase %s' % ph)
            if ph == 'a':
                phase_a(K, pf, last)
            elif ph == 'b':
                phase_b(K, pf, first, last)
            elif ph == 'c':
                phase_c(K, pf, first, last)
            else:
                phase_d(K, pf, first)
        if PROF:
            K.wait(vm=0)
        pf.flush(4)
        K.end()
        K.resume(f_end)
        K.end()
        ks.append(K)
    hdr = open('cdna_kernels/%s.s.ref' % NAME).read().split('\n')
    out = [l for l in hdr if l.startswith(';') and '@launch' not in l and 'Override launch' not in l and 'grid=ceil' not in l][:14]
    for K in ks:
        if len(ks) == 1:
            out.append('; @launch grid=(256,1,1) block=(256,1,1) lds=163840')
        else:
            out.append('; @launch kernel=%s grid=(256,1,1) block=(256,1,1) lds=163840' % K.name)
    out += ['.amdgcn_target "amdgcn-amd-amdhsa--gfx950"', '.text']
    for K in ks:
        out.append(K.render())
    out.append('.section .rodata,"a"')
    for K in ks:
        out.append(K.descriptor())
    dst = [a for a in sys.argv[1:] if not a.startswith('--')][0]
    open(dst, 'w').write('\n'.join(out) + '\n')
    for K in ks:
        n = sum(isinstance(i, Ins) for i in K.items)
        print(K.name[:30], 'v%d a%d s%d' % (K.maxv + 1, K.maxa + 1, K.maxs + 1), 'instrs', n)


main()
```
